```python
import torch

def _softmax(x, axis=-1):
    return torch.softmax(x, dim=axis)
def _gelu(x):
    return torch.nn.functional.gelu(x, approximate="tanh")
def _silu(x):
    return torch.nn.functional.silu(x)
def _sigmoid(x):
    return torch.sigmoid(x)
def _layernorm(x, axis=-1, eps=1e-5):
    m = x.mean(dim=axis, keepdim=True)
    v = x.var(dim=axis, keepdim=True, unbiased=False)
    return (x - m) / torch.sqrt(v + eps)
def _scatter_add(tgt, idx, src, axis=0):
    return tgt.clone().index_add_(axis, idx, src)
def _segment_sum(src, seg, n):
    out = torch.zeros((n,) + src.shape[1:], dtype=src.dtype)
    return out.index_add_(0, seg, src)
def _pad(x, pw):
    flat = tuple(v for pair in reversed(pw) for v in pair)
    return torch.nn.functional.pad(x, flat)

kernel_name = 'gated_mix__linear_kernel_hedgehog__linear_kernel_hedgehog__prompt'

def setup_inputs():

    _w = (lambda a: (lambda t: t.to(torch.bfloat16) if t.is_floating_point() else t)(torch.as_tensor(a)))
    def _A_setup():
        B, S, D, H = 1, 2048, 576, 32
        Dh = D // H
        return {
            "x": _w((lambda *s: torch.randn(*s, dtype=torch.bfloat16) * 0.05)(B, S, D)),
            "wqkv": _w((lambda *s: torch.randn(*s, dtype=torch.bfloat16) * 0.8)(D, 3 * D)),
            "w_phi": _w((lambda *s: torch.randn(*s, dtype=torch.bfloat16) * 0.8)(H, Dh, Dh) * (Dh ** -0.5)),
            "wo": _w((lambda *s: torch.randn(*s, dtype=torch.bfloat16) * 0.05)(D, D)),
        }
    _A_in = _A_setup()

    def _B_setup():
        B, S, D, H = 1, 2048, 576, 32
        Dh = D // H
        return {
            "x": _w((lambda *s: torch.randn(*s, dtype=torch.bfloat16) * 0.05)(B, S, D)),
            "wqkv": _w((lambda *s: torch.randn(*s, dtype=torch.bfloat16) * 0.8)(D, 3 * D)),
            "w_phi": _w((lambda *s: torch.randn(*s, dtype=torch.bfloat16) * 0.8)(H, Dh, Dh) * (Dh ** -0.5)),
            "wo": _w((lambda *s: torch.randn(*s, dtype=torch.bfloat16) * 0.05)(D, D)),
        }
    _B_in = _B_setup()

    return {
        "A_x": _A_in["x"],
        "A_wqkv": _A_in["wqkv"],
        "A_w_phi": _A_in["w_phi"],
        "A_wo": _A_in["wo"],
        "B_x": _B_in["x"],
        "B_wqkv": _B_in["wqkv"],
        "B_w_phi": _B_in["w_phi"],
        "B_wo": _B_in["wo"],
        "gate_w": _w((lambda *s: torch.randn(*s, dtype=torch.bfloat16) * 0.05)(576) * 16.0),
    }

def reference(A_x, A_wqkv, A_w_phi, A_wo, B_x, B_wqkv, B_w_phi, B_wo, gate_w):
    def _A_ref(x, wqkv, w_phi, wo):
        B, S, D = x.shape
        H = 32; Dh = D // H
        qkv = (lambda x, *d: x.permute(*d))((x @ wqkv).reshape(B, S, 3, H, Dh), 2, 0, 3, 1, 4)
        q, k, v = qkv[0], qkv[1], qkv[2]
        pq = torch.einsum("bhsd,hdf->bhsf", q, w_phi)
        pk = torch.einsum("bhsd,hdf->bhsf", k, w_phi)
        phi_q = torch.concatenate([_softmax(pq, axis=-1), _softmax(-pq, axis=-1)], axis=-1)
        phi_k = torch.concatenate([_softmax(pk, axis=-1), _softmax(-pk, axis=-1)], axis=-1)
        kv = torch.einsum("bhsf,bhsd->bhfd", phi_k, v)
        z  = torch.einsum("bhsf->bhf", phi_k)
        num = torch.einsum("bhqf,bhfd->bhqd", phi_q, kv)
        den = torch.einsum("bhqf,bhf->bhq", phi_q, z)[..., None] + 1e-6
        o = num / den
        return (lambda x, *d: x.permute(*d))(o, 0, 2, 1, 3).reshape(B, S, D) @ wo

    def _B_ref(x, wqkv, w_phi, wo):
        B, S, D = x.shape
        H = 32; Dh = D // H
        qkv = (lambda x, *d: x.permute(*d))((x @ wqkv).reshape(B, S, 3, H, Dh), 2, 0, 3, 1, 4)
        q, k, v = qkv[0], qkv[1], qkv[2]
        pq = torch.einsum("bhsd,hdf->bhsf", q, w_phi)
        pk = torch.einsum("bhsd,hdf->bhsf", k, w_phi)
        phi_q = torch.concatenate([_softmax(pq, axis=-1), _softmax(-pq, axis=-1)], axis=-1)
        phi_k = torch.concatenate([_softmax(pk, axis=-1), _softmax(-pk, axis=-1)], axis=-1)
        kv = torch.einsum("bhsf,bhsd->bhfd", phi_k, v)
        z  = torch.einsum("bhsf->bhf", phi_k)
        num = torch.einsum("bhqf,bhfd->bhqd", phi_q, kv)
        den = torch.einsum("bhqf,bhf->bhq", phi_q, z)[..., None] + 1e-6
        o = num / den
        return (lambda x, *d: x.permute(*d))(o, 0, 2, 1, 3).reshape(B, S, D) @ wo

    x = A_x
    g = _sigmoid((x * gate_w).sum(-1, keepdims=True))
    a = _A_ref(x, A_wqkv, A_w_phi, A_wo)
    b = _B_ref(x, B_wqkv, B_w_phi, B_wo)
    return g * a + (1 - g) * b
```

```python
import re

TRANS = ('v_exp_f32', 'v_log_f32', 'v_rcp_f32', 'v_rsq_f32', 'v_sqrt_f32', 'v_sin_f32', 'v_cos_f32')


def expand(op):
    op = op.strip()
    neg = op.lstrip('-')
    m = re.fullmatch(r'abs\((.*)\)', neg)
    if m:
        neg = m.group(1)
    neg = neg.strip('|')
    m = re.fullmatch(r'([vas])\[(\d+):(\d+)\]', neg)
    if m:
        return ['%s%d' % (m.group(1), i) for i in range(int(m.group(2)), int(m.group(3)) + 1)]
    m = re.fullmatch(r'([vas])(\d+)', neg)
    if m:
        return [neg]
    if neg in ('vcc', 'exec', 'm0', 'scc'):
        return [neg]
    if neg in ('vcc_lo', 'vcc_hi'):
        return ['vcc']
    if neg in ('exec_lo', 'exec_hi'):
        return ['exec']
    return []


class Rec:
    __slots__ = ('kind', 'mn', 'reads', 'writes', 'srcc', 'ab', 'ws', 'dpp', 'wide_store', 'passes', 'is_load')


class Gen:
    def __init__(self):
        self.lines = []
        self.hist = []
        self.vmq = []
        self.lgq = []
        self.nins = 0
        self.nops = 0

    def raw(self, text):
        self.lines.append(text)

    def comment(self, text):
        self.lines.append('    ; ' + text)

    def label(self, name):
        self.lines.append(name + ':')
    def reset_hist(self):
        self.hist = []

    def parse(self, text):
        t = text.strip()
        mn = t.split()[0]
        rest = t[len(mn):].strip()
        ops = []
        depth = 0
        cur = ''
        for ch in rest:
            if ch in '[(':
                depth += 1
            if ch in '])':
                depth -= 1
            if ch == ',' and depth == 0:
                ops.append(cur.strip())
                cur = ''
            else:
                cur += ch
        if cur.strip():
            ops.append(cur.strip())
        mods = ''
        if ops:
            parts = ops[-1].split()
            if parts:
                ops[-1] = parts[0]
                mods = ' '.join(parts[1:])
        r = Rec()
        r.mn = mn
        r.reads = set()
        r.writes = set()
        r.srcc = set()
        r.ab = set()
        r.ws = 1
        r.dpp = ('_dpp' in mn) or ('quad_perm' in mods) or ('row_' in mods)
        r.wide_store = False
        r.passes = 0
        r.is_load = False
        E = [expand(o) for o in ops]
        if mn == 's_nop':
            r.kind = 'nop'
            r.ws = int(ops[0], 0) + 1
        elif mn.startswith('v_mfma'):
            r.kind = 'mfma'
            r.writes = set(E[0])
            r.ab = set(E[1]) | set(E[2])
            r.srcc = set(E[3])
            r.reads = r.ab | r.srcc
            r.passes = 8 if '32x32' in mn else 4
        elif mn.startswith('v_cmp'):
            r.kind = 'valu'
            r.writes = set(E[0])
            for e in E[1:]:
                r.reads |= set(e)
        elif mn.startswith('v_'):
            r.kind = 'trans' if mn.replace('_e32', '').replace('_e64', '') in TRANS else 'valu'
            r.writes = set(E[0])
            for e in E[1:]:
                r.reads |= set(e)
            if mn.startswith(('v_fmac', 'v_dot2c', 'v_pk_fmac')):
                r.reads |= set(E[0])
            if mn.startswith('v_permlane') and 'swap' in mn:
                r.reads |= set(E[0])
                r.writes |= set(E[1])
            if mn.startswith(('v_add_co', 'v_sub_co', 'v_addc_co', 'v_subb_co')):
                r.writes |= set(E[1])
            if mn.startswith('v_cndmask') and len(ops) == 3:
                r.reads.add('vcc')
            if r.dpp:
                r.reads |= set(E[0])
        elif mn.startswith(('buffer_', 'global_', 'flat_')):
            r.kind = 'vmem'
            is_lds = (' lds' in (' ' + mods)) or ('_lds_' in mn)
            if 'store' in mn or 'atomic' in mn or is_lds:
                for e in E:
                    r.reads |= set(e)
                if is_lds:
                    r.reads.add('m0')
                    r.kind = 'ldsdma'
                if 'x4' in mn or 'x3' in mn:
                    if not is_lds:
                        r.wide_store = True
                        r.srcc = set(E[0]) if mn.startswith('buffer_') else set(E[1])
            else:
                r.writes = set(E[0])
                r.is_load = True
                for e in E[1:]:
                    r.reads |= set(e)
        elif mn.startswith('ds_'):
            r.kind = 'ds'
            if mn.startswith(('ds_read', 'ds_swizzle', 'ds_bpermute', 'ds_permute')):
                r.writes = set(E[0])
                r.is_load = True
                for e in E[1:]:
                    r.reads |= set(e)
            else:
                for e in E:
                    r.reads |= set(e)
        elif mn.startswith('s_'):
            r.kind = 'salu'
            if mn.startswith(('s_cmp', 's_cbranch', 's_branch', 's_waitcnt', 's_barrier', 's_endpgm', 's_setprio',
                              's_sleep')):
                for e in E:
                    r.reads |= set(e)
            else:
                if E:
                    r.writes = set(E[0])
                for e in E[1:]:
                    r.reads |= set(e)
                if 'saveexec' in mn:
                    r.writes.add('exec')
        else:
            raise ValueError('unknown instr ' + text)
        return r

    def need(self, c):
        req = 0
        dist = 0
        for p in reversed(self.hist):
            if dist > 24:
                break
            n = 0
            isvalu_p = p.kind in ('valu', 'trans')
            isvalu_c = c.kind in ('valu', 'trans')
            pv = {x for x in p.writes if x[0] in 'va' and x not in ('vcc',)}
            ps = {x for x in p.writes if x[0] == 's' or x == 'vcc'}
            if isvalu_p:
                if c.kind == 'mfma' and (pv & c.reads):
                    n = max(n, 2)
                if p.kind == 'trans' and c.kind == 'valu' and (pv & c.reads):
                    n = max(n, 1)
                if isvalu_c and (ps & c.reads):
                    n = max(n, 4 if c.mn.startswith(('v_readlane', 'v_writelane')) else 2)
                if c.kind in ('vmem', 'ldsdma') and (ps & c.reads):
                    n = max(n, 5)
                if isvalu_c and c.dpp and (pv & c.reads):
                    n = max(n, 2)
                if c.mn.startswith(('v_readlane', 'v_readfirstlane')) and (pv & c.reads):
                    n = max(n, 1)
                if c.mn.startswith('v_permlane') and (pv & c.reads):
                    n = max(n, 2)
                if c.kind == 'salu' and (ps & c.reads):
                    n = max(n, 1)
            if p.kind == 'mfma':
                big = {4: 8, 8: 12}[p.passes]
                ovl = {4: 6, 8: 10}[p.passes]
                war = {4: 3, 8: 7}[p.passes]
                if c.kind == 'mfma':
                    if p.writes & c.ab:
                        n = max(n, big)
                    if p.writes & c.srcc:
                        if c.srcc == p.writes and c.passes == p.passes:
                            pass
                        else:
                            n = max(n, ovl)
                    elif p.writes & c.writes:
                        n = max(n, ovl)
                else:
                    if p.writes & (c.reads | c.writes):
                        n = max(n, big)
                    if isvalu_c and (p.srcc & c.writes):
                        n = max(n, war)
            if p.kind == 'salu' and 'm0' in p.writes and c.kind == 'ldsdma':
                n = max(n, 1)
            if p.wide_store and (p.srcc & c.writes):
                n = max(n, 2)
            if n > dist:
                req = max(req, n - dist)
            dist += p.ws
        return req

    def I(self, text, vm=None, lg=None):
        r = self.parse(text)
        k = self.need(r)
        while k > 0:
            n = min(k, 16)
            nr = self.parse('s_nop %d' % (n - 1))
            self.lines.append('    s_nop %d' % (n - 1))
            self.hist.append(nr)
            self.nops += 1
            k -= n
        self.lines.append('    ' + text)
        self.hist.append(r)
        if len(self.hist) > 64:
            self.hist = self.hist[-40:]
        self.nins += 1
        if r.kind in ('vmem', 'ldsdma'):
            self.vmq.append(vm)
        elif r.kind == 'ds':
            self.lgq.append(lg)
        return r

    def wait_vm(self, tag):
        idxs = [i for i, t in enumerate(self.vmq) if t == tag]
        if not idxs:
            return
        idx = max(idxs)
        n = len(self.vmq) - 1 - idx
        assert n <= 63, n
        self.I('s_waitcnt vmcnt(%d)' % n)
        self.vmq = self.vmq[idx + 1:]

    def wait_vm_all(self):
        self.I('s_waitcnt vmcnt(0)')
        self.vmq = []

    def wait_lg(self, tag):
        idxs = [i for i, t in enumerate(self.lgq) if t == tag]
        if not idxs:
            return
        idx = max(idxs)
        n = len(self.lgq) - 1 - idx
        assert n <= 15, n
        self.I('s_waitcnt lgkmcnt(%d)' % n)
        self.lgq = self.lgq[idx + 1:]

    def wait_lg_all(self):
        self.I('s_waitcnt lgkmcnt(0)')
        self.lgq = []

    def wait_all(self):
        self.I('s_waitcnt vmcnt(0) lgkmcnt(0)')
        self.vmq = []
        self.lgq = []

    def text(self):
        return '\n'.join(self.lines) + '\n'


def vr(a, n=1):
    return 'v%d' % a if n == 1 else 'v[%d:%d]' % (a, a + n - 1)


def ar(a, n=1):
    return 'a%d' % a if n == 1 else 'a[%d:%d]' % (a, a + n - 1)


def sr(a, n=1):
    return 's%d' % a if n == 1 else 's[%d:%d]' % (a, a + n - 1)
```

```python
import sys
from asmgen import Gen, vr, ar, sr

NAME = 'gated_mix__linear_kernel_hedgehog__linear_kernel_hedgehog__prompt'

WS_PQ01 = 0
WS_PQ2 = 4 << 20
WS_PART = 5 << 20
WS_G = 8 << 20
WS_WOF = 9 << 20
WS_OF = 11 << 20
WS_SIZE = 16 << 20
OOB = 0x40000000
LOG2E = 0x3fb8aa3b

PITCH = 448
SLOT = 64 * PITCH
NSLOT = 5
TBL = NSLOT * SLOT
K1_LDS = TBL + 4 * 1920
PHI = 0
PHIP = 296
VBUF = 4 * SLOT


def load_ptrs(g):
    g.I('s_load_dwordx16 s[36:51], s[0:1], 0')
    g.I('s_load_dwordx8 s[52:59], s[0:1], 64')


def srd(g, d, lo, nbytes):
    g.I('s_mov_b32 s%d, s%d' % (d, lo))
    g.I('s_and_b32 s%d, s%d, 0xffff' % (d + 1, lo + 1))
    g.I('s_mov_b32 s%d, 0x%x' % (d + 2, nbytes))
    g.I('s_mov_b32 s%d, 0x20000' % (d + 3))


def softmax_exps(g, P, EP, EN, T, sC):
    mx, mn = T, T + 2
    g.I('v_max3_f32 %s, %s, %s, %s' % (vr(mx), vr(P), vr(P + 1), vr(P + 2)))
    g.I('v_min3_f32 %s, %s, %s, %s' % (vr(mn), vr(P), vr(P + 1), vr(P + 2)))
    for k in range(3, 17, 2):
        g.I('v_max3_f32 %s, %s, %s, %s' % (vr(mx), vr(mx), vr(P + k), vr(P + k + 1)))
        g.I('v_min3_f32 %s, %s, %s, %s' % (vr(mn), vr(mn), vr(P + k), vr(P + k + 1)))
    g.I('v_max_f32 %s, %s, %s' % (vr(mx), vr(mx), vr(P + 17)))
    g.I('v_min_f32 %s, %s, %s' % (vr(mn), vr(mn), vr(P + 17)))
    g.I('v_mul_f32 %s, s%d, %s' % (vr(mx), sC, vr(mx)))
    g.I('v_mul_f32 %s, s%d, %s' % (vr(mn), sC, vr(mn)))
    for k in range(0, 18, 2):
        g.I('v_pk_fma_f32 %s, %s, %s, %s op_sel_hi:[1,1,0] neg_lo:[0,0,1] neg_hi:[0,0,1]' % (
            vr(EP + k, 2), vr(P + k, 2), sr(sC, 2), vr(mx, 2)))
        g.I('v_pk_fma_f32 %s, %s, %s, %s op_sel_hi:[1,1,0] neg_lo:[1,0,0] neg_hi:[1,0,0]' % (
            vr(EN + k, 2), vr(P + k, 2), sr(sC, 2), vr(mn, 2)))
    for k in range(18):
        g.I('v_exp_f32 %s, %s' % (vr(EP + k), vr(EP + k)))
        g.I('v_exp_f32 %s, %s' % (vr(EN + k), vr(EN + k)))


def k1(g):
    ACC = 8

    def acc(t, u):
        return ACC + (2 * t + u) * 4
    RING = 128
    NR = 8
    D = 6
    vQK, vV0, vV1, vV4 = 160, 161, 162, 163
    vDMA = 164
    vX0, vX1 = 171, 172
    vLane, vG, vI, vR, vC = 173, 174, 175, 176, 177
    vT = 178
    GX = 192
    GW = 202
    WP = 212
    WO = 222
    WO2 = 232
    vGoff, vWOst = 240, 241
    XA = 0
    WPA = 144

    g.raw('.p2align 8')
    g.label('hh_k1_kernel')
    g.I('s_cmp_ge_u32 s2, 256')
    g.I('s_cbranch_scc1 K1_END')
    load_ptrs(g)
    g.I('s_and_b32 s65, s2, 7')
    g.I('s_lshr_b32 s66, s2, 3')
    g.I('s_and_b32 s60, s65, 1')
    g.I('s_lshl_b32 s60, s60, 3')
    g.I('s_and_b32 s67, s66, 7')
    g.I('s_add_u32 s60, s60, s67')
    g.I('s_lshr_b32 s61, s65, 1')
    g.I('s_lshl_b32 s61, s61, 2')
    g.I('s_lshr_b32 s67, s66, 3')
    g.I('s_add_u32 s61, s61, s67')
    g.I('s_lshr_b32 s62, s61, 3')
    g.I('s_and_b32 s63, s61, 7')
    g.I('v_and_b32 %s, 63, v0' % vr(vLane))
    g.I('v_lshrrev_b32 %s, 6, v0' % vr(vT))
    g.I('v_lshrrev_b32 %s, 4, %s' % (vr(vG), vr(vLane)))
    g.I('v_readfirstlane_b32 s64, %s' % vr(vT))
    g.I('v_and_b32 %s, 15, %s' % (vr(vI), vr(vLane)))
    g.I('v_lshrrev_b32 %s, 2, %s' % (vr(vR), vr(vI)))
    g.I('v_and_b32 %s, 3, %s' % (vr(vC), vr(vI)))
    g.I('s_lshl_b32 s68, s60, 7')
    g.I('s_lshl_b32 s67, s64, 5')
    g.I('s_add_u32 s68, s68, s67')
    g.I('v_add_u32 %s, s68, %s' % (vr(vT), vr(vI)))
    g.I('v_mul_u32_u24 %s, 1152, %s' % (vr(vT), vr(vT)))
    g.I('v_lshl_add_u32 %s, %s, 4, %s' % (vr(vX0), vr(vG), vr(vT)))
    g.I('v_add_u32 %s, 18432, %s' % (vr(vX1), vr(vX0)))
    g.I('s_mul_i32 s69, s63, 144')
    g.I('s_mul_i32 s70, s64, 7168')
    g.I('s_mul_i32 s71, s64, 55296')
    g.I('s_mov_b32 s72, 0x%x' % LOG2E)
    g.I('s_mov_b32 s73, 0x%x' % LOG2E)
    g.I('s_waitcnt lgkmcnt(0)')
    srd(g, 8, 36, 2048 * 1152)
    g.I('s_cmp_eq_u32 s62, 0')
    g.I('s_cselect_b64 s[4:5], s[38:39], s[46:47]')
    g.I('s_cselect_b64 s[6:7], s[40:41], s[48:49]')
    srd(g, 12, 4, 576 * 3456)
    srd(g, 16, 58, WS_SIZE)
    srd(g, 20, 6, 32 * 648)
    srd(g, 28, 52, 1152)

    def xload(ks):
        for u in range(2):
            g.I('buffer_load_dwordx4 %s, %s, s[8:11], 0 offen offset:%d' % (
                ar(XA + (u * 18 + ks) * 4, 4), vr(vX0 + u), ks * 64), vm=('x', ks))

    xload(0)
    xload(1)

    tbl = 0
    for v_, val in enumerate([4, 1, 3, 0, 2, 4, 1, 3, 0]):
        tbl |= val << (3 * v_)
    g.I('s_mov_b32 s74, 0x%x' % tbl)
    g.I('s_mov_b32 s75, 0x%x' % OOB)

    def dma_off(i):
        P, row, s_, pp, part, q, t2 = vT, vT + 1, vT + 2, vT + 3, vT + 4, vT + 5, vT + 6
        g.I('v_add_u32 %s, %d, %s' % (vr(P), 64 * i, vr(vLane)))
        g.I('v_mul_u32_u24 %s, 2341, %s' % (vr(row), vr(P)))
        g.I('v_lshrrev_b32 %s, 16, %s' % (vr(row), vr(row)))
        g.I('v_mul_u32_u24 %s, 28, %s' % (vr(s_), vr(row)))
        g.I('v_sub_u32 %s, %s, %s' % (vr(s_), vr(P), vr(s_)))
        g.I('v_lshrrev_b32 %s, 3, %s' % (vr(t2), vr(row)))
        g.I('v_sub_u32 %s, %s, %s' % (vr(pp), vr(s_), vr(t2)))
        g.I('v_mul_u32_u24 %s, 57, %s' % (vr(part), vr(pp)))
        g.I('v_lshrrev_b32 %s, 9, %s' % (vr(part), vr(part)))
        g.I('v_mul_u32_u24 %s, 9, %s' % (vr(q), vr(part)))
        g.I('v_sub_u32 %s, %s, %s' % (vr(q), vr(pp), vr(q)))
        g.I('v_mul_u32_u24 %s, 3, %s' % (vr(t2), vr(q)))
        g.I('v_lshrrev_b32 %s, %s, s74' % (vr(t2), vr(t2)))
        g.I('v_and_b32 %s, 7, %s' % (vr(t2), vr(t2)))
        g.I('v_add3_u32 %s, %s, %s, -2' % (vr(t2), vr(t2), vr(q)))
        g.I('v_cmp_eq_u32 vcc, 2, %s' % vr(part))
        g.I('v_cndmask_b32 %s, %s, %s, vcc' % (vr(q), vr(q), vr(t2)))
        g.I('v_mul_u32_u24 %s, 3456, %s' % (vr(row), vr(row)))
        g.I('v_mul_u32_u24 %s, 1152, %s' % (vr(part), vr(part)))
        g.I('v_lshl_add_u32 %s, %s, 4, %s' % (vr(q), vr(q), vr(row)))
        g.I('v_add3_u32 %s, %s, %s, s69' % (vr(q), vr(q), vr(part)))
        g.I('v_cmp_lt_u32 vcc, 26, %s' % vr(pp))
        g.I('v_mov_b32 %s, s75' % vr(t2))
        g.I('v_cndmask_b32 %s, %s, %s, vcc' % (vr(vDMA + i), vr(q), vr(t2)))

    def dma(c, i):
        slot = c % NSLOT
        g.I('s_add_u32 m0, s70, %d' % (slot * SLOT + i * 1024))
        g.I('s_add_u32 s76, s71, %d' % (c * 64 * 3456))
        g.I('buffer_load_dwordx4 %s, s[12:15], s76 offen lds' % vr(vDMA + i), vm=('w', c))

    for i in range(7):
        dma_off(i)
        dma(0, i)

    g.I('s_lshl_b32 s77, s60, 7')
    g.I('s_lshl_b32 s67, s61, 3')
    g.I('s_add_u32 s77, s77, s67')
    g.I('s_lshl_b32 s67, s64, 1')
    g.I('s_add_u32 s77, s77, s67')
    g.I('v_lshrrev_b32 %s, 5, %s' % (vr(vT), vr(vLane)))
    g.I('v_add_u32 %s, s77, %s' % (vr(vT), vr(vT)))
    g.I('v_and_b32 %s, 31, %s' % (vr(vT + 1), vr(vLane)))
    g.I('v_mul_u32_u24 %s, 36, %s' % (vr(vT + 2), vr(vT + 1)))
    g.I('v_mul_u32_u24 %s, 1152, %s' % (vr(vT + 3), vr(vT)))
    g.I('v_add_u32 %s, %s, %s' % (vr(vT + 3), vr(vT + 3), vr(vT + 2)))
    g.I('buffer_load_dwordx4 %s, %s, s[8:11], 0 offen' % (vr(GX, 4), vr(vT + 3)), vm='side')
    g.I('buffer_load_dwordx4 %s, %s, s[8:11], 0 offen offset:16' % (vr(GX + 4, 4), vr(vT + 3)), vm='side')
    g.I('buffer_load_dword %s, %s, s[8:11], 0 offen offset:32' % (vr(GX + 8), vr(vT + 3)), vm='side')
    g.I('buffer_load_dwordx4 %s, %s, s[28:31], 0 offen' % (vr(GW, 4), vr(vT + 2)), vm='side')
    g.I('buffer_load_dwordx4 %s, %s, s[28:31], 0 offen offset:16' % (vr(GW + 4, 4), vr(vT + 2)), vm='side')
    g.I('buffer_load_dword %s, %s, s[28:31], 0 offen offset:32' % (vr(GW + 8), vr(vT + 2)), vm='side')
    g.I('v_lshlrev_b32 %s, 2, %s' % (vr(vT), vr(vT)))
    g.I('v_add_u32 %s, 0x%x, %s' % (vr(vT), WS_G, vr(vT)))
    g.I('v_cmp_eq_u32 vcc, 0, %s' % vr(vT + 1))
    g.I('v_mov_b32 %s, s75' % vr(vT + 2))
    g.I('v_cndmask_b32 %s, %s, %s, vcc' % (vr(vGoff), vr(vT + 2), vr(vT)))
    g.I('s_lshl_b32 s67, s63, 2')
    g.I('s_add_u32 s67, s67, s64')
    g.I('s_mul_i32 s67, s67, 648')
    g.I('v_mul_u32_u24 %s, 36, %s' % (vr(vT), vr(vLane)))
    g.I('v_add_u32 %s, s67, %s' % (vr(vT), vr(vT)))
    g.I('v_cmp_gt_u32 vcc, 18, %s' % vr(vLane))
    g.I('v_mov_b32 %s, s75' % vr(vT + 2))
    g.I('v_cndmask_b32 %s, %s, %s, vcc' % (vr(vT), vr(vT + 2), vr(vT)))
    g.I('buffer_load_dwordx4 %s, %s, s[20:23], 0 offen' % (vr(WP, 4), vr(vT)), vm='side')
    g.I('buffer_load_dwordx4 %s, %s, s[20:23], 0 offen offset:16' % (vr(WP + 4, 4), vr(vT)), vm='side')
    g.I('buffer_load_dword %s, %s, s[20:23], 0 offen offset:32' % (vr(WP + 8), vr(vT)), vm='side')
    g.I('s_lshl_b32 s78, s2, 2')
    g.I('s_add_u32 s78, s78, s64')
    g.I('s_mul_i32 s79, s78, 52429')
    g.I('s_lshr_b32 s79, s79, 18')
    g.I('s_mul_i32 s67, s79, 5')
    g.I('s_sub_u32 s80, s78, s67')
    g.I('s_cmp_ge_u32 s79, 72')
    g.I('s_cselect_b64 s[4:5], s[50:51], s[42:43]')
    g.I('s_cselect_b32 s67, 72, 0')
    g.I('s_sub_u32 s81, s79, s67')
    srd(g, 24, 4, 576 * 1152)
    g.I('s_lshr_b32 s82, s81, 1')
    g.I('s_mul_i32 s82, s82, 18')
    g.I('s_and_b32 s67, s81, 1')
    g.I('s_lshl_b32 s67, s67, 3')
    g.I('s_add_u32 s82, s82, s67')
    g.I('s_sub_u32 s83, s81, 64')
    g.I('s_mul_i32 s83, s83, 72')
    g.I('s_add_u32 s83, s83, 16')
    g.I('s_cmp_lt_u32 s81, 64')
    g.I('s_cselect_b32 s82, s82, s83')
    g.I('s_mul_i32 s82, s82, 1152')
    g.I('s_lshl_b32 s67, s80, 6')
    g.I('v_add_u32 %s, s67, %s' % (vr(vT), vr(vLane)))
    g.I('v_lshlrev_b32 %s, 2, %s' % (vr(vT + 1), vr(vT)))
    g.I('s_mul_i32 s84, s79, 576*16')
    g.I('s_add_u32 s84, s84, 0x%x' % WS_WOF)
    g.I('v_lshl_add_u32 %s, %s, 5, s84' % (vr(vT + 3), vr(vT)))
    g.I('s_movk_i32 s67, 288')
    g.I('s_cmp_lt_u32 s78, 720')
    g.I('s_cselect_b32 s67, s67, 0')
    g.I('v_cmp_gt_u32 vcc, s67, %s' % vr(vT))
    g.I('v_mov_b32 %s, s75' % vr(vT + 2))
    g.I('v_cndmask_b32 %s, %s, %s, vcc' % (vr(vT + 1), vr(vT + 2), vr(vT + 1)))
    g.I('v_cndmask_b32 %s, %s, %s, vcc' % (vr(vWOst), vr(vT + 2), vr(vT + 3)))
    for j in range(8):
        g.I('s_cmp_lt_u32 s81, 64')
        g.I('s_movk_i32 s67, %d' % (j * 1152))
        g.I('s_cselect_b32 s67, s67, %d' % ((18 * (j >> 1) + (j & 1)) * 1152))
        g.I('s_add_u32 s67, s67, s82')
        g.I('buffer_load_dword %s, %s, s[24:27], s67 offen' % (vr(WO + j), vr(vT + 1)), vm='side')

    for c in range(1, 3):
        xload(2 * c)
        xload(2 * c + 1)
        for i in range(7):
            dma(c, i)

    g.I('v_lshl_add_u32 %s, %s, 3, %s' % (vr(vT), vr(vG), vr(vR)))
    g.I('v_mul_u32_u24 %s, %d, %s' % (vr(vT), PITCH, vr(vT)))
    g.I('v_and_b32 %s, 1, %s' % (vr(vT + 1), vr(vG)))
    g.I('v_lshl_add_u32 %s, %s, 4, %s' % (vr(vT), vr(vT + 1), vr(vT)))
    g.I('v_lshlrev_b32 %s, 3, %s' % (vr(vT + 1), vr(vC)))

    def tabsel(dst, vals, add):
        packed = 0
        for k_, v_ in enumerate(vals):
            packed |= v_ << (8 * k_)
        g.I('s_mov_b32 s67, 0x%x' % packed)
        g.I('v_lshrrev_b32 %s, %s, s67' % (vr(vT + 2), vr(vT + 1)))
        g.I('v_and_b32 %s, 0xff, %s' % (vr(vT + 2), vr(vT + 2)))
        g.I('v_add_u32 %s, %s, %s' % (vr(vT + 2), vr(vT + 2), vr(vT)))
        g.I('v_add_u32 %s, %d, %s' % (vr(dst), add, vr(vT + 2)))
    tabsel(vQK, [0, 32, 72, 104], 0)
    tabsel(vV0, [16, 24, 48, 56], 288)
    tabsel(vV1, [8, 32, 40, 64], 288)
    tabsel(vV4, [0, 136, 32, 104], 288)

    cur_slot = [0]

    def set_slot(slot):
        d = (slot - cur_slot[0]) * SLOT
        if d:
            for v_ in (vQK, vV0, vV1, vV4):
                if d > 0:
                    g.I('v_add_u32 %s, %d, %s' % (vr(v_), d, vr(v_)))
                else:
                    g.I('v_subrev_u32 %s, %d, %s' % (vr(v_), -d, vr(v_)))
        cur_slot[0] = slot

    def frag_reads(n):
        ks, t = divmod(n, 15)
        c, ksl = divmod(ks, 2)
        set_slot(c % NSLOT)
        if t < 10:
            va, off = vQK, (t // 5) * 144 + 8 * (t % 5)
        else:
            b = t - 10
            va, off = [(vV0, 0), (vV1, 0), (vV1, 64), (vV0, 64), (vV4, 0)][b]
        R = RING + (n % NR) * 4
        for h in range(2):
            g.I('ds_read_b64_tr_b16 %s, %s offset:%d' % (vr(R + 2 * h, 2), vr(va), ksl * 32 * PITCH + h * 4 * PITCH + off),
                lg=('f', n))

    def frag_mfma(n):
        ks, t = divmod(n, 15)
        R = RING + (n % NR) * 4
        for u in range(2):
            A = acc(t, u)
            xa = ar(XA + (u * 18 + ks) * 4, 4)
            cc = '0' if ks == 0 else vr(A, 4)
            if t < 10:
                g.I('v_mfma_f32_16x16x32_bf16 %s, %s, %s, %s' % (vr(A, 4), vr(R, 4), xa, cc))
            else:
                g.I('v_mfma_f32_16x16x32_bf16 %s, %s, %s, %s' % (vr(A, 4), xa, vr(R, 4), cc))

    def side_jobs():
        g.wait_vm('side')
        g.I('v_mov_b32 %s, 0' % vr(vT))
        for k_ in range(9):
            g.I('v_dot2_f32_bf16 %s, %s, %s, %s' % (vr(vT), vr(GX + k_), vr(GW + k_), vr(vT)))
        g.I('s_nop 3')
        for pat in ('quad_perm:[1,0,3,2]', 'quad_perm:[2,3,0,1]', 'row_half_mirror', 'row_mirror'):
            g.I('v_add_f32_dpp %s, %s, %s %s row_mask:0xf bank_mask:0xf' % (vr(vT), vr(vT), vr(vT), pat))
        g.I('ds_swizzle_b32 %s, %s offset:0x401F' % (vr(vT + 1), vr(vT)), lg='sw')
        for k_ in range(4):
            g.I('v_mov_b32 %s, 0' % vr(vT + 4 + k_))
        g.I('s_mul_i32 s67, s64, 1920')
        g.I('s_add_u32 s67, s67, %d' % TBL)
        g.I('v_min_u32 %s, 59, %s' % (vr(vT + 2), vr(vLane)))
        g.I('v_lshl_add_u32 %s, %s, 4, s67' % (vr(vT + 2), vr(vT + 2)))
        g.I('ds_write_b128 %s, %s' % (vr(vT + 2), vr(vT + 4, 4)), lg='z')
        g.I('ds_write_b128 %s, %s offset:960' % (vr(vT + 2), vr(vT + 4, 4)), lg='z')
        g.I('s_and_b32 s85, s64, 1')
        g.I('s_lshl_b32 s85, s85, 1')
        g.I('v_add_u32 %s, s85, %s' % (vr(vT + 2), vr(vLane)))
        g.I('v_lshrrev_b32 %s, 3, %s' % (vr(vT + 3), vr(vT + 2)))
        g.I('v_and_b32 %s, 7, %s' % (vr(vT + 2), vr(vT + 2)))
        g.I('v_lshlrev_b32 %s, 1, %s' % (vr(vT + 2), vr(vT + 2)))
        g.I('v_lshl_add_u32 %s, %s, 6, %s' % (vr(vT + 2), vr(vT + 3), vr(vT + 2)))
        g.I('v_add_u32 %s, s67, %s' % (vr(vT + 2), vr(vT + 2)))
        g.I('s_mov_b64 exec, 0x3ffff')
        for f in range(18):
            off = (f >> 2) * 192 + (f & 3) * 16
            op = 'ds_write_b16_d16_hi' if (f & 1) else 'ds_write_b16'
            g.I('%s %s, %s offset:%d' % (op, vr(vT + 2), vr(WP + f // 2), off), lg='z')
            if f % 6 == 5:
                g.wait_lg_all()
        g.I('s_mov_b64 exec, -1')
        g.I('v_add_f32 %s, %s, %s' % (vr(vT), vr(vT), vr(vT + 1)))
        g.I('v_mul_f32 %s, s72, %s' % (vr(vT), vr(vT)))
        g.I('v_exp_f32 %s, -%s' % (vr(vT), vr(vT)))
        g.I('v_add_f32 %s, 1.0, %s' % (vr(vT), vr(vT)))
        g.I('v_rcp_f32 %s, %s' % (vr(vT), vr(vT)))
        g.I('s_nop 0')
        g.I('buffer_store_dword %s, %s, s[16:19], 0 offen' % (vr(vT), vr(vGoff)), vm='st')
        g.I('s_mov_b32 s67, 0x05040100')
        g.I('s_mov_b32 s85, 0x07060302')
        for m in range(4):
            g.I('v_perm_b32 %s, %s, %s, s67' % (vr(WO2 + m), vr(WO + 2 * m + 1), vr(WO + 2 * m)))
            g.I('v_perm_b32 %s, %s, %s, s85' % (vr(WO2 + 4 + m), vr(WO + 2 * m + 1), vr(WO + 2 * m)))
        g.I('buffer_store_dwordx4 %s, %s, s[16:19], 0 offen' % (vr(WO2, 4), vr(vWOst)), vm='st')
        g.I('buffer_store_dwordx4 %s, %s, s[16:19], 0 offen offset:16' % (vr(WO2 + 4, 4), vr(vWOst)), vm='st')

    def wphi_frags():
        g.I('v_lshlrev_b32 %s, 4, %s' % (vr(vT), vr(vC)))
        g.I('v_mov_b32 %s, 960' % vr(vT + 1))
        g.I('v_cmp_eq_u32 vcc, %s, %s' % (vr(vR), vr(vG)))
        g.I('v_cndmask_b32 %s, %s, %s, vcc' % (vr(vT), vr(vT + 1), vr(vT)))
        g.I('v_mul_u32_u24 %s, 1920, %s' % (vr(vT + 1), vr(vG)))
        g.I('v_add3_u32 %s, %s, %s, s86' % (vr(vT), vr(vT), vr(vT + 1)))
        for f in range(15):
            g.I('ds_read_b128 %s, %s offset:%d' % (ar(WPA + 4 * f, 4), vr(vT), f * 64), lg='wpf')
            if f % 5 == 4:
                g.wait_lg_all()

    g.I('s_mov_b32 s86, %d' % TBL)
    NF = 18 * 15
    sched = {}

    def sched_chunk(cc, n0, step):
        items = [('x', 2 * cc), ('x', 2 * cc + 1)] + [('w', cc, i) for i in range(7)]
        for k_, it in enumerate(items):
            sched.setdefault(n0 + k_ * step, []).append(it)
    sched_chunk(3, 1, 1)
    sched_chunk(4, 13, 2)
    for cc in range(5, 9):
        sched_chunk(cc, (cc - 4) * 30 + 13, 2)
    g.wait_vm(('w', 0))
    g.I('s_barrier')
    for n in range(D):
        frag_reads(n)
    for n in range(NF):
        ks, t = divmod(n, 15)
        c = ks // 2
        if n % 15 == 0:
            if ('x', ks) in g.vmq:
                g.wait_vm(('x', ks))
        if n % 30 == 12 and c + 1 < 9:
            if c == 2:
                g.wait_lg_all()
                side_jobs()
                g.wait_lg_all()
            if ('w', c + 1) in g.vmq:
                g.wait_vm(('w', c + 1))
            g.I('s_barrier')
            if c == 4:
                g.wait_lg_all()
                wphi_frags()
        for item in sched.get(n, []):
            if item[0] == 'x':
                xload(item[1])
            else:
                dma(item[1], item[2])
        g.wait_lg(('f', n))
        frag_mfma(n)
        if n + D < NF:
            frag_reads(n + D)

    PK = 128
    P = 140
    EP = 192
    EN = 210
    T4 = 228
    OUT = 236
    g.I('v_mov_b32 %s, 0' % vr(PK + 10))
    g.I('v_mov_b32 %s, 0' % vr(PK + 11))

    def phi_proj(t0, u):
        for m in range(10):
            t, r_ = m >> 1, (m & 1) * 2
            g.I('v_cvt_pk_bf16_f32 %s, %s, %s' % (vr(PK + m), vr(acc(t0 + t, u) + r_), vr(acc(t0 + t, u) + r_ + 1)))
        for ic in range(3):
            for oc in range(5):
                cc = '0' if ic == 0 else vr(P + 4 * oc, 4)
                g.I('v_mfma_f32_16x16x32_bf16 %s, %s, %s, %s' % (
                    vr(P + 4 * oc, 4), ar(WPA + (oc * 3 + ic) * 4, 4), vr(PK + 4 * ic, 4), cc))

    vPQ, vPQ2 = 1, 2
    g.I('v_lshl_add_u32 %s, %s, 12, %s' % (vr(vT + 2), vr(vG), vr(vI)))
    g.I('v_lshlrev_b32 %s, 4, %s' % (vr(vPQ), vr(vT + 2)))
    g.I('v_lshl_add_u32 %s, %s, 11, %s' % (vr(vT + 2), vr(vG), vr(vI)))
    g.I('v_lshlrev_b32 %s, 2, %s' % (vr(vPQ2), vr(vT + 2)))
    g.I('s_lshl_b32 s87, s61, 2')
    g.I('s_lshl_b32 s88, s87, 12')
    g.I('s_add_u32 s88, s88, s68')
    g.I('s_lshl_b32 s88, s88, 4')
    g.I('s_add_u32 s89, s88, 32768')
    g.I('s_lshl_b32 s90, s87, 11')
    g.I('s_add_u32 s90, s90, s68')
    g.I('s_lshl_b32 s90, s90, 2')
    g.I('s_add_u32 s90, s90, 0x%x' % WS_PQ2)
    for u in range(2):
        phi_proj(0, u)
        for m in range(9):
            g.I('v_cvt_pk_bf16_f32 %s, %s, %s' % (vr(OUT + m), vr(P + 2 * m), vr(P + 2 * m + 1)))
        g.I('buffer_store_dwordx4 %s, %s, s[16:19], s88 offen offset:%d' % (vr(OUT, 4), vr(vPQ), u * 256), vm='st')
        g.I('buffer_store_dwordx4 %s, %s, s[16:19], s89 offen offset:%d' % (vr(OUT + 4, 4), vr(vPQ), u * 256), vm='st')
        g.I('buffer_store_dword %s, %s, s[16:19], s90 offen offset:%d' % (vr(OUT + 8), vr(vPQ2), u * 64), vm='st')
    vPhiW = 3
    g.I('s_lshl_b32 s67, s64, 5')
    g.I('v_add_u32 %s, s67, %s' % (vr(vT + 4), vr(vI)))
    g.I('v_mul_u32_u24 %s, %d, %s' % (vr(vT + 4), PHIP, vr(vT + 4)))
    g.I('v_mul_u32_u24 %s, 72, %s' % (vr(vT + 5), vr(vG)))
    g.I('v_add3_u32 %s, %s, %s, %d' % (vr(vPhiW), vr(vT + 4), vr(vT + 5), PHI))
    for u in range(2):
        phi_proj(5, u)
        softmax_exps(g, P, EP, EN, T4, 72)
        for E in (EP, EN):
            S = T4 + 4
            g.I('v_pk_add_f32 %s, %s, %s' % (vr(S, 2), vr(E, 2), vr(E + 2, 2)))
            for k_ in range(4, 18, 2):
                g.I('v_pk_add_f32 %s, %s, %s' % (vr(S, 2), vr(S, 2), vr(E + k_, 2)))
            g.I('v_add_f32 %s, %s, %s' % (vr(S), vr(S), vr(S + 1)))
            g.I('v_rcp_f32 %s, %s' % (vr(S), vr(S)))
            for k_ in range(0, 18, 2):
                g.I('v_pk_mul_f32 %s, %s, %s op_sel_hi:[1,0]' % (vr(E + k_, 2), vr(E + k_, 2), vr(S, 2)))
        for m in range(9):
            g.I('v_cvt_pk_bf16_f32 %s, %s, %s' % (vr(OUT + m), vr(EP + 2 * m), vr(EP + 2 * m + 1)))
            g.I('v_cvt_pk_bf16_f32 %s, %s, %s' % (vr(OUT + 9 + m), vr(EN + 2 * m), vr(EN + 2 * m + 1)))
        for m in range(9):
            g.I('ds_write_b64 %s, %s offset:%d' % (vr(vPhiW), vr(OUT + 2 * m, 2), u * 16 * PHIP + 8 * m), lg='phi')
        g.wait_lg_all()
    vVb = 4
    g.I('s_mul_i32 s67, s64, 5120')
    g.I('s_add_u32 s67, s67, %d' % VBUF)
    g.I('v_lshl_add_u32 %s, %s, 4, s67' % (vr(vVb), vr(vLane)))
    g.I('v_cmp_lt_u32 vcc, 7, %s' % vr(vI))
    g.I('v_mov_b32 %s, 0x3f803f80' % vr(vT + 4))
    for b in range(5):
        O = OUT + (b % 2) * 4
        for u in range(2):
            for hlf in range(2):
                g.I('v_cvt_pk_bf16_f32 %s, %s, %s' % (vr(O + 2 * u + hlf), vr(acc(10 + b, u) + 2 * hlf),
                                                      vr(acc(10 + b, u) + 2 * hlf + 1)))
        if b == 4:
            for k_ in range(4):
                g.I('v_cndmask_b32 %s, %s, %s, vcc' % (vr(O + k_), vr(O + k_), vr(vT + 4)))
        g.I('ds_write_b128 %s, %s offset:%d' % (vr(vVb), vr(O, 4), b * 1024), lg='v')
        g.wait_lg_all()
    g.wait_lg_all()
    g.I('s_barrier')
    vPhiR, vVr, vVr4 = 5, 6, 7
    g.I('v_lshl_add_u32 %s, %s, 2, %s' % (vr(vT + 4), vr(vG), vr(vR)))
    g.I('v_mul_u32_u24 %s, %d, %s' % (vr(vT + 4), PHIP, vr(vT + 4)))
    g.I('v_lshl_add_u32 %s, %s, 3, %s' % (vr(vT + 4), vr(vC), vr(vT + 4)))
    g.I('s_mul_i32 s67, s64, 72')
    g.I('v_add_u32 %s, s67, %s' % (vr(vPhiR), vr(vT + 4)))
    g.I('s_lshl_b32 s67, s64, 10')
    g.I('s_add_u32 s67, s67, %d' % VBUF)
    g.I('v_lshl_add_u32 %s, %s, 4, s67' % (vr(vVr), vr(vLane)))
    g.I('v_lshlrev_b32 %s, 4, %s' % (vr(vT + 5), vr(vLane)))
    g.I('v_add_u32 %s, %d, %s' % (vr(vVr4), VBUF + 4096, vr(vT + 5)))
    KV = 8
    AF = 32
    BF = 80
    for ksw in range(4):
        for a_ in range(3):
            for h in range(2):
                g.I('ds_read_b64_tr_b16 %s, %s offset:%d' % (
                    vr(AF + ksw * 12 + a_ * 4 + 2 * h, 2), vr(vPhiR), PHI + (32 * ksw + 16 * h) * PHIP + 32 * a_),
                    lg=('kv', ksw))
        g.I('ds_read_b128 %s, %s offset:%d' % (vr(BF + ksw * 8, 4), vr(vVr), ksw * 5120), lg=('kv', ksw))
        g.I('ds_read_b128 %s, %s offset:%d' % (vr(BF + ksw * 8 + 4, 4), vr(vVr4), ksw * 5120), lg=('kv', ksw))
        g.wait_lg(('kv', ksw))
        for a_ in range(3):
            for wh in range(2):
                Dr = KV + (a_ * 2 + wh) * 4
                cc = '0' if ksw == 0 else vr(Dr, 4)
                g.I('v_mfma_f32_16x16x32_bf16 %s, %s, %s, %s' % (
                    vr(Dr, 4), vr(AF + ksw * 12 + a_ * 4, 4), vr(BF + ksw * 8 + 4 * wh, 4), cc))
    vO0, vO2, vQ0, vQ2 = 190, 191, 254, 255
    g.I('s_and_b32 s85, s64, 1')
    g.I('s_lshl_b32 s85, s85, 1')
    g.I('v_mul_u32_u24 %s, 20, %s' % (vr(vT + 4), vr(vG)))
    g.I('v_add3_u32 %s, %s, %s, s85' % (vr(vT + 5), vr(vT + 4), vr(vI)))
    g.I('v_lshlrev_b32 %s, 4, %s' % (vr(vO0), vr(vT + 5)))
    g.I('v_mov_b32 %s, s75' % vr(vT + 6))
    g.I('v_cmp_eq_u32 vcc, 0, %s' % vr(vG))
    g.I('v_cndmask_b32 %s, %s, %s, vcc' % (vr(vO2), vr(vT + 6), vr(vO0)))
    g.I('s_cmp_eq_u32 s85, 0')
    g.I('s_cselect_b32 s67, 16, 0')
    g.I('v_and_b32 %s, 1, %s' % (vr(vT + 5), vr(vI)))
    g.I('v_add_u32 %s, s67, %s' % (vr(vT + 5), vr(vT + 5)))
    g.I('v_mov_b32 %s, 18' % vr(vT + 7))
    g.I('v_cmp_eq_u32 vcc, 8, %s' % vr(vI))
    g.I('v_cndmask_b32 %s, %s, %s, vcc' % (vr(vT + 5), vr(vT + 5), vr(vT + 7)))
    g.I('v_add_u32 %s, %s, %s' % (vr(vT + 5), vr(vT + 5), vr(vT + 4)))
    g.I('v_lshlrev_b32 %s, 4, %s' % (vr(vT + 5), vr(vT + 5)))
    g.I('v_lshrrev_b32 %s, 1, %s' % (vr(vT + 7), vr(vI)))
    g.I('v_cmp_eq_u32 s[92:93], s64, %s' % vr(vT + 7))
    g.I('s_or_b64 vcc, vcc, s[92:93]')
    g.I('v_cndmask_b32 %s, %s, %s, vcc' % (vr(vQ0), vr(vT + 6), vr(vT + 5)))
    g.I('v_cmp_eq_u32 vcc, 0, %s' % vr(vG))
    g.I('v_cndmask_b32 %s, %s, %s, vcc' % (vr(vQ2), vr(vT + 6), vr(vQ0)))
    g.I('s_add_u32 s67, s87, s64')
    g.I('s_lshl_b32 s67, s67, 4')
    g.I('s_add_u32 s67, s67, s60')
    g.I('s_mul_i32 s67, s67, 3072')
    g.I('s_add_u32 s67, s67, 0x%x' % WS_PART)
    for a_ in range(3):
        for wh in range(2):
            Dr = KV + (a_ * 2 + wh) * 4
            vo = [[vO0, vQ0], [vO0, vQ0], [vO2, vQ2]][a_][wh]
            g.I('buffer_store_dwordx4 %s, %s, s[16:19], s67 offen offset:%d' % (vr(Dr, 4), vr(vo), a_ * 1280), vm='st')
    g.label('K1_END')
    g.I('s_endpgm')
    g.reset_hist()
    g.vmq = []
    g.lgq = []


K2_LDS = 3840


def k2(g):
    g.raw('.p2align 8')
    g.label('hh_k2_kernel')
    g.I('s_cmp_ge_u32 s2, 256')
    g.I('s_cbranch_scc1 K2_END')
    g.I('s_load_dwordx2 s[58:59], s[0:1], 88')
    g.I('s_and_b32 s65, s2, 7')
    g.I('s_lshr_b32 s66, s2, 3')
    g.I('s_lshl_b32 s60, s65, 3')
    g.I('s_lshr_b32 s67, s66, 2')
    g.I('s_add_u32 s60, s60, s67')
    g.I('s_and_b32 s61, s66, 3')
    vLane, vG, vI, vT = 1, 2, 3, 4
    g.I('v_and_b32 %s, 63, v0' % vr(vLane))
    g.I('v_lshrrev_b32 %s, 6, v0' % vr(vT))
    g.I('v_lshrrev_b32 %s, 4, %s' % (vr(vG), vr(vLane)))
    g.I('v_readfirstlane_b32 s64, %s' % vr(vT))
    g.I('v_and_b32 %s, 15, %s' % (vr(vI), vr(vLane)))
    g.I('s_mov_b32 s72, 0x%x' % LOG2E)
    g.I('s_mov_b32 s73, 0x%x' % LOG2E)
    g.I('s_mov_b32 s75, 0x%x' % OOB)
    for k_ in range(4):
        g.I('v_mov_b32 %s, 0' % vr(vT + 4 + k_))
    g.I('v_min_u32 %s, 239, v0' % vr(vT))
    g.I('v_lshlrev_b32 %s, 4, %s' % (vr(vT), vr(vT)))
    g.I('ds_write_b128 %s, %s' % (vr(vT), vr(vT + 4, 4)), lg='z')
    g.I('s_lshl_b32 s68, s61, 9')
    g.I('v_add_u32 %s, s68, v0' % vr(vT + 1))
    vTok16, vTok4 = 16, 17
    g.I('v_lshlrev_b32 %s, 4, %s' % (vr(vTok16), vr(vT + 1)))
    g.I('v_lshlrev_b32 %s, 2, %s' % (vr(vTok4), vr(vT + 1)))
    g.I('s_waitcnt lgkmcnt(0)')
    g.lgq = []
    srd(g, 16, 58, WS_SIZE)
    PRT = 64
    PQ = 20
    g.I('s_cmp_ge_u32 s64, 3')
    g.I('s_cbranch_scc1 K2_NOPART')
    g.I('v_lshlrev_b32 %s, 4, v0' % vr(vT))
    g.I('v_mov_b32 %s, s75' % vr(vT + 2))
    g.I('v_cmp_gt_u32 vcc, 180, v0')
    g.I('v_cndmask_b32 %s, %s, %s, vcc' % (vr(vT), vr(vT + 2), vr(vT)))
    g.I('s_mul_i32 s67, s60, 16*3072')
    g.I('s_add_u32 s67, s67, 0x%x' % WS_PART)
    for tb in range(16):
        g.I('buffer_load_dwordx4 %s, %s, s[16:19], s67 offen' % (vr(PRT + 4 * tb, 4), vr(vT)), vm='p')
        if tb < 15:
            g.I('s_add_u32 s67, s67, 3072')
    g.label('K2_NOPART')
    g.I('s_lshl_b32 s69, s60, 16')
    g.I('s_add_u32 s70, s69, 32768')
    g.I('s_lshl_b32 s71, s60, 13')
    g.I('s_add_u32 s71, s71, 0x%x' % WS_PQ2)
    g.I('buffer_load_dwordx4 %s, %s, s[16:19], s69 offen' % (vr(PQ, 4), vr(vTok16)), vm='q')
    g.I('buffer_load_dwordx4 %s, %s, s[16:19], s70 offen' % (vr(PQ + 4, 4), vr(vTok16)), vm='q')
    g.I('buffer_load_dword %s, %s, s[16:19], s71 offen' % (vr(PQ + 8), vr(vTok4)), vm='q')
    g.I('s_barrier')
    g.wait_vm_all()
    g.I('s_cmp_ge_u32 s64, 3')
    g.I('s_cbranch_scc1 K2_NOTAB')
    for tb in range(1, 16):
        for k_ in range(0, 4, 2):
            g.I('v_pk_add_f32 %s, %s, %s' % (vr(PRT + k_, 2), vr(PRT + k_, 2), vr(PRT + 4 * tb + k_, 2)))
    fq, ds, a0, a1, t2 = vT, vT + 1, vT + 2, vT + 3, vT + 4
    g.I('v_mul_u32_u24 %s, 3277, v0' % vr(fq))
    g.I('v_lshrrev_b32 %s, 16, %s' % (vr(fq), vr(fq)))
    g.I('v_mul_u32_u24 %s, 20, %s' % (vr(ds), vr(fq)))
    g.I('v_sub_u32 %s, v0, %s' % (vr(ds), vr(ds)))
    g.I('v_cvt_pk_bf16_f32 %s, %s, %s' % (vr(PRT + 4), vr(PRT), vr(PRT + 1)))
    g.I('v_cvt_pk_bf16_f32 %s, %s, %s' % (vr(PRT + 5), vr(PRT + 2), vr(PRT + 3)))
    g.I('v_mov_b32 %s, 0x3f803f80' % vr(t2))
    g.I('v_cmp_eq_u32 vcc, 19, %s' % vr(ds))
    g.I('v_cndmask_b32 %s, %s, %s, vcc' % (vr(PRT + 4), vr(PRT + 4), vr(t2)))
    g.I('v_cndmask_b32 %s, %s, %s, vcc' % (vr(PRT + 5), vr(PRT + 5), vr(t2)))
    g.I('v_lshrrev_b32 %s, 2, %s' % (vr(a0), vr(ds)))
    g.I('v_mul_u32_u24 %s, 192, %s' % (vr(a0), vr(a0)))
    g.I('v_and_b32 %s, 3, %s' % (vr(t2), vr(ds)))
    g.I('v_lshl_add_u32 %s, %s, 4, %s' % (vr(a0), vr(t2), vr(a0)))
    g.I('v_lshrrev_b32 %s, 1, %s' % (vr(t2), vr(fq)))
    g.I('v_lshl_add_u32 %s, %s, 6, %s' % (vr(a0), vr(t2), vr(a0)))
    g.I('v_and_b32 %s, 1, %s' % (vr(t2), vr(fq)))
    g.I('v_lshl_add_u32 %s, %s, 3, %s' % (vr(a0), vr(t2), vr(a0)))
    g.I('v_add_u32 %s, 4, %s' % (vr(a1), vr(a0)))
    g.I('v_add_u32 %s, 832, %s' % (vr(t2), vr(a0)))
    g.I('v_cmp_lt_u32 vcc, 4, %s' % vr(fq))
    g.I('v_cndmask_b32 %s, %s, %s, vcc' % (vr(a0), vr(a0), vr(t2)))
    g.I('v_add_u32 %s, 832, %s' % (vr(t2), vr(a1)))
    g.I('v_cmp_lt_u32 vcc, 3, %s' % vr(fq))
    g.I('v_cndmask_b32 %s, %s, %s, vcc' % (vr(a1), vr(a1), vr(t2)))
    g.I('v_cmp_gt_u32 vcc, 180, v0')
    g.I('s_and_saveexec_b64 s[90:91], vcc')
    g.I('ds_write_b32 %s, %s' % (vr(a0), vr(PRT + 4)), lg='t')
    g.I('ds_write_b32 %s, %s' % (vr(a1), vr(PRT + 5)), lg='t')
    g.I('s_mov_b64 exec, -1')
    g.label('K2_NOTAB')
    g.reset_hist()
    g.I('s_nop 1')
    P = 30
    EP = 128
    EN = 146
    T4 = 48
    E = 52
    for m in range(9):
        g.I('v_lshlrev_b32 %s, 16, %s' % (vr(P + 2 * m), vr(PQ + m)))
        g.I('v_and_b32 %s, 0xffff0000, %s' % (vr(P + 2 * m + 1), vr(PQ + m)))
    softmax_exps(g, P, EP, EN, T4, 72)
    g.wait_lg_all()
    for m in range(9):
        g.I('v_cvt_pk_bf16_f32 %s, %s, %s' % (vr(E + m), vr(EP + 2 * m), vr(EP + 2 * m + 1)))
        g.I('v_cvt_pk_bf16_f32 %s, %s, %s' % (vr(E + 9 + m), vr(EN + 2 * m), vr(EN + 2 * m + 1)))
    g.I('v_mov_b32 %s, 0' % vr(E + 18))
    g.I('v_mov_b32 %s, 0' % vr(E + 19))
    g.I('v_and_b32 %s, 3, %s' % (vr(vT), vr(vI)))
    g.I('v_lshlrev_b32 %s, 4, %s' % (vr(vT), vr(vT)))
    g.I('v_mov_b32 %s, 1920' % vr(vT + 1))
    g.I('v_lshrrev_b32 %s, 2, %s' % (vr(vT + 2), vr(vI)))
    g.I('v_cmp_eq_u32 vcc, %s, %s' % (vr(vT + 2), vr(vG)))
    g.I('v_cndmask_b32 %s, %s, %s, vcc' % (vr(vT), vr(vT + 1), vr(vT)))
    g.I('s_barrier')
    AF = 128
    N = 72
    for f in range(30):
        g.I('ds_read_b128 %s, %s offset:%d' % (vr(AF + 4 * f, 4), vr(vT), f * 64), lg=('a', f // 3))
        if f >= 12 and f % 3 == 2:
            pass
        if f % 3 == 2 and f >= 11:
            so = f // 3 - 3
            g.wait_lg(('a', so))
            sg, oc = divmod(so, 5)
            for icl in range(3):
                cc = '0' if icl == 0 else vr(N + 4 * so, 4)
                g.I('v_mfma_f32_16x16x32_bf16 %s, %s, %s, %s' % (
                    vr(N + 4 * so, 4), vr(AF + 4 * (3 * so + icl), 4), vr(E + 4 * (icl + 2 * sg), 4), cc))
    for so in range(7, 10):
        g.wait_lg(('a', so))
        sg, oc = divmod(so, 5)
        for icl in range(3):
            cc = '0' if icl == 0 else vr(N + 4 * so, 4)
            g.I('v_mfma_f32_16x16x32_bf16 %s, %s, %s, %s' % (
                vr(N + 4 * so, 4), vr(AF + 4 * (3 * so + icl), 4), vr(E + 4 * (icl + 2 * sg), 4), cc))
    Np, Nn = N, N + 20
    ra, rb, den = 8, 10, 12
    g.I('v_rcp_f32 %s, %s' % (vr(ra), vr(Np + 19)))
    g.I('v_rcp_f32 %s, %s' % (vr(rb), vr(Nn + 19)))
    g.I('v_mov_b32 %s, 0x358637bd' % vr(den))
    g.I('v_fmac_f32 %s, %s, %s' % (vr(den), vr(Np + 18), vr(ra)))
    g.I('v_fmac_f32 %s, %s, %s' % (vr(den), vr(Nn + 18), vr(rb)))
    g.I('v_rcp_f32 %s, %s' % (vr(den), vr(den)))
    g.I('v_mul_f32 %s, %s, %s' % (vr(ra), vr(ra), vr(den)))
    g.I('v_mul_f32 %s, %s, %s' % (vr(rb), vr(rb), vr(den)))
    for k_ in range(0, 18, 2):
        g.I('v_pk_mul_f32 %s, %s, %s op_sel_hi:[1,0]' % (vr(Np + k_, 2), vr(Np + k_, 2), vr(ra, 2)))
        g.I('v_pk_fma_f32 %s, %s, %s, %s op_sel_hi:[1,0,1]' % (vr(Np + k_, 2), vr(Nn + k_, 2), vr(rb, 2), vr(Np + k_, 2)))
    O = 20
    for m in range(9):
        g.I('v_cvt_pk_bf16_f32 %s, %s, %s' % (vr(O + m), vr(Np + 2 * m), vr(Np + 2 * m + 1)))
    g.I('s_lshr_b32 s62, s60, 5')
    g.I('s_and_b32 s63, s60, 31')
    g.I('s_mul_i32 s67, s62, 72')
    g.I('s_lshl_b32 s69, s63, 1')
    g.I('s_add_u32 s69, s69, s67')
    g.I('s_lshl_b32 s69, s69, 15')
    g.I('s_add_u32 s69, s69, 0x%x' % WS_OF)
    g.I('s_add_u32 s70, s69, 32768')
    g.I('s_lshr_b32 s71, s63, 2')
    g.I('s_add_u32 s71, s71, s67')
    g.I('s_add_u32 s71, s71, 64')
    g.I('s_lshl_b32 s71, s71, 15')
    g.I('s_and_b32 s67, s63, 3')
    g.I('s_lshl_b32 s67, s67, 2')
    g.I('s_add_u32 s71, s71, s67')
    g.I('s_add_u32 s71, s71, 0x%x' % WS_OF)
    g.I('buffer_store_dwordx4 %s, %s, s[16:19], s69 offen' % (vr(O, 4), vr(vTok16)), vm='st')
    g.I('buffer_store_dwordx4 %s, %s, s[16:19], s70 offen' % (vr(O + 4, 4), vr(vTok16)), vm='st')
    g.I('buffer_store_dword %s, %s, s[16:19], s71 offen' % (vr(O + 8), vr(vTok16)), vm='st')
    g.label('K2_END')
    g.I('s_endpgm')
    g.reset_hist()
    g.vmq = []
    g.lgq = []


K3_LDS = 4 * 20 * 1024


def k3(g):
    g.raw('.p2align 8')
    g.label('hh_k3_kernel')
    g.I('s_cmp_ge_u32 s2, 256')
    g.I('s_cbranch_scc1 K3_END')
    g.I('s_load_dwordx2 s[54:55], s[0:1], 72')
    g.I('s_load_dwordx2 s[58:59], s[0:1], 88')
    g.I('s_and_b32 s65, s2, 7')
    g.I('s_lshr_b32 s66, s2, 3')
    g.I('s_lshr_b32 s60, s65, 1')
    g.I('s_lshl_b32 s60, s60, 3')
    g.I('s_and_b32 s67, s66, 7')
    g.I('s_add_u32 s60, s60, s67')
    g.I('s_and_b32 s61, s65, 1')
    g.I('s_lshl_b32 s61, s61, 2')
    g.I('s_lshr_b32 s67, s66, 3')
    g.I('s_add_u32 s61, s61, s67')
    vLane, vG, vI, vT = 1, 2, 3, 4
    vO, vW, vGt = 12, 13, 14
    GT = 16
    g.I('v_and_b32 %s, 63, v0' % vr(vLane))
    g.I('v_lshrrev_b32 %s, 6, v0' % vr(vT))
    g.I('v_lshrrev_b32 %s, 4, %s' % (vr(vG), vr(vLane)))
    g.I('v_readfirstlane_b32 s64, %s' % vr(vT))
    g.I('v_and_b32 %s, 15, %s' % (vr(vI), vr(vLane)))
    g.I('v_lshl_add_u32 %s, %s, 11, %s' % (vr(vT), vr(vG), vr(vI)))
    g.I('v_lshlrev_b32 %s, 4, %s' % (vr(vO), vr(vT)))
    g.I('v_mul_u32_u24 %s, 576, %s' % (vr(vT), vr(vG)))
    g.I('v_add_u32 %s, %s, %s' % (vr(vT), vr(vT), vr(vI)))
    g.I('v_lshlrev_b32 %s, 4, %s' % (vr(vW), vr(vT)))
    g.I('s_mul_i32 s68, s64, 36*2048*16')
    g.I('s_lshl_b32 s67, s60, 10')
    g.I('s_add_u32 s68, s68, s67')
    g.I('s_add_u32 s68, s68, 0x%x' % WS_OF)
    g.I('s_mul_i32 s69, s64, 36*576*16')
    g.I('s_mul_i32 s67, s61, 72*16')
    g.I('s_add_u32 s69, s69, s67')
    g.I('s_add_u32 s69, s69, 0x%x' % WS_WOF)
    g.I('s_lshl_b32 s70, s60, 8')
    g.I('s_add_u32 s70, s70, 0x%x' % WS_G)
    g.I('v_lshlrev_b32 %s, 2, %s' % (vr(vGt), vr(vI)))
    g.I('s_waitcnt lgkmcnt(0)')
    srd(g, 16, 58, WS_SIZE)
    srd(g, 8, 54, 2048 * 1152)
    ACC = 20
    NB = 7

    def loads(s):
        base = (s % NB) * 36
        for u in range(4):
            g.I('buffer_load_dwordx4 %s, %s, s[16:19], s68 offen offset:%d' % (ar(base + 4 * u, 4), vr(vO), 256 * u),
                vm=('k', s))
        for t in range(5):
            g.I('buffer_load_dwordx4 %s, %s, s[16:19], s69 offen offset:%d' % (ar(base + 16 + 4 * t, 4), vr(vW), 256 * t),
                vm=('k', s))
        g.I('s_add_u32 s68, s68, %d' % (4 * 2048 * 16))
        g.I('s_add_u32 s69, s69, %d' % (4 * 576 * 16))

    for u in range(4):
        g.I('buffer_load_dword %s, %s, s[16:19], s70 offen offset:%d' % (vr(GT + u), vr(vGt), 64 * u), vm='g')
    for s in range(6):
        loads(s)
    for s in range(9):
        g.wait_vm(('k', s))
        base = (s % NB) * 36
        for t in range(5):
            for u in range(4):
                A = ACC + (t * 4 + u) * 4
                cc = '0' if s == 0 else vr(A, 4)
                g.I('v_mfma_f32_16x16x32_bf16 %s, %s, %s, %s' % (
                    vr(A, 4), ar(base + 16 + 4 * t, 4), ar(base + 4 * u, 4), cc))
        if s + 6 < 9:
            loads(s + 6)
    g.I('s_cmp_ge_u32 s64, 2')
    g.I('s_cselect_b32 s71, 1.0, 0')
    g.I('s_cselect_b32 s72, -1.0, 1.0')
    for u in range(4):
        g.I('v_mul_f32 %s, s72, %s' % (vr(GT + u), vr(GT + u)))
        g.I('v_add_f32 %s, s71, %s' % (vr(GT + u), vr(GT + u)))
    g.I('s_mul_i32 s67, s64, 20480')
    g.I('v_lshl_add_u32 %s, %s, 4, s67' % (vr(vT), vr(vLane)))
    for t in range(5):
        for u in range(4):
            A = ACC + (t * 4 + u) * 4
            for k_ in range(4):
                g.I('v_mul_f32 %s, %s, %s' % (vr(A + k_), vr(GT + u), vr(A + k_)))
            g.I('ds_write_b128 %s, %s offset:%d' % (vr(vT), vr(A, 4), (t * 4 + u) * 1024), lg='w')
            if len(g.lgq) >= 12:
                g.wait_lg_all()
    g.wait_lg_all()
    g.I('s_barrier')
    R = 100
    for j in range(3):
        p, tok, pc, a_, t2 = vT, vT + 1, vT + 2, vT + 3, vT + 4
        g.I('v_add_u32 %s, %d, v0' % (vr(p), 256 * j))
        g.I('v_mul_u32_u24 %s, 7282, %s' % (vr(tok), vr(p)))
        g.I('v_lshrrev_b32 %s, 16, %s' % (vr(tok), vr(tok)))
        g.I('v_mul_u32_u24 %s, 9, %s' % (vr(pc), vr(tok)))
        g.I('v_sub_u32 %s, %s, %s' % (vr(pc), vr(p), vr(pc)))
        g.I('v_lshrrev_b32 %s, 1, %s' % (vr(a_), vr(pc)))
        g.I('v_lshlrev_b32 %s, 2, %s' % (vr(a_), vr(a_)))
        g.I('v_lshrrev_b32 %s, 4, %s' % (vr(t2), vr(tok)))
        g.I('v_add_u32 %s, %s, %s' % (vr(a_), vr(a_), vr(t2)))
        g.I('v_lshlrev_b32 %s, 6, %s' % (vr(a_), vr(a_)))
        g.I('v_and_b32 %s, 1, %s' % (vr(t2), vr(pc)))
        g.I('v_lshl_add_u32 %s, %s, 5, %s' % (vr(a_), vr(t2), vr(a_)))
        g.I('v_and_b32 %s, 15, %s' % (vr(t2), vr(tok)))
        g.I('v_add_u32 %s, %s, %s' % (vr(a_), vr(a_), vr(t2)))
        g.I('v_lshlrev_b32 %s, 4, %s' % (vr(a_), vr(a_)))
        if j == 2:
            g.I('v_min_u32 %s, 20000, %s' % (vr(a_), vr(a_)))
        for w in range(4):
            g.I('ds_read_b128 %s, %s offset:%d' % (vr(R + 8 * w, 4), vr(a_), w * 20480), lg='r')
            g.I('ds_read_b128 %s, %s offset:%d' % (vr(R + 8 * w + 4, 4), vr(a_), w * 20480 + 256), lg='r')
        g.I('s_lshl_b32 s67, s60, 6')
        g.I('v_add_u32 %s, s67, %s' % (vr(tok), vr(tok)))
        g.I('v_mul_u32_u24 %s, 1152, %s' % (vr(tok), vr(tok)))
        g.I('v_lshl_add_u32 %s, %s, 4, %s' % (vr(tok), vr(pc), vr(tok)))
        g.I('s_mul_i32 s67, s61, 144')
        g.I('v_add_u32 %s, s67, %s' % (vr(tok), vr(tok)))
        if j == 2:
            g.I('v_mov_b32 %s, 0x%x' % (vr(t2), OOB))
            g.I('v_cmp_gt_u32 vcc, 576, %s' % vr(p))
            g.I('v_cndmask_b32 %s, %s, %s, vcc' % (vr(tok), vr(t2), vr(tok)))
        g.wait_lg_all()
        for k_ in range(0, 8, 2):
            g.I('v_pk_add_f32 %s, %s, %s' % (vr(R + k_, 2), vr(R + k_, 2), vr(R + 8 + k_, 2)))
            g.I('v_pk_add_f32 %s, %s, %s' % (vr(R + 16 + k_, 2), vr(R + 16 + k_, 2), vr(R + 24 + k_, 2)))
            g.I('v_pk_add_f32 %s, %s, %s' % (vr(R + k_, 2), vr(R + k_, 2), vr(R + 16 + k_, 2)))
        OUT = 132 + 4 * j
        for m in range(4):
            g.I('v_cvt_pk_bf16_f32 %s, %s, %s' % (vr(OUT + m), vr(R + 2 * m), vr(R + 2 * m + 1)))
        g.I('buffer_store_dwordx4 %s, %s, s[8:11], 0 offen' % (vr(OUT, 4), vr(tok)), vm='st')
    g.label('K3_END')
    g.I('s_endpgm')
    g.reset_hist()
    g.vmq = []
    g.lgq = []


def descriptor(name, nvgpr, accum, nsgpr=102):
    return '''.amdhsa_kernel %s
  .amdhsa_next_free_vgpr %d
  .amdhsa_next_free_sgpr %d
  .amdhsa_accum_offset %d
  .amdhsa_group_segment_fixed_size 0
  .amdhsa_kernarg_size 96
  .amdhsa_user_sgpr_count 2
  .amdhsa_user_sgpr_kernarg_segment_ptr 1
  .amdhsa_system_sgpr_workgroup_id_x 1
.end_amdhsa_kernel
''' % (name, nvgpr, nsgpr, accum)


def main(out):
    g = Gen()
    hdr = open('cdna_kernels/%s.s.ref' % NAME).read().split('\n')
    head = [l for l in hdr if l.startswith(';') and '@launch' not in l and 'Override launch' not in l
            and 'grid=ceil' not in l]
    txt = '\n'.join(head) + '\n'
    txt += '; @launch kernel=hh_k1_kernel grid=(256,1,1) block=(256,1,1) lds=%d\n' % K1_LDS
    txt += '; @launch kernel=hh_k2_kernel grid=(256,1,1) block=(512,1,1) lds=%d\n' % K2_LDS
    txt += '; @launch kernel=hh_k3_kernel grid=(256,1,1) block=(256,1,1) lds=%d\n' % K3_LDS
    txt += '.amdgcn_target "amdgcn-amd-amdhsa--gfx950"\n.text\n'
    for k in ('hh_k1_kernel', 'hh_k2_kernel', 'hh_k3_kernel'):
        txt += '.globl %s\n.type %s,@function\n' % (k, k)
    k1(g)
    k2(g)
    k3(g)
    txt += g.text()
    txt += '.section .rodata,"a"\n.p2align 6\n'
    txt += descriptor('hh_k1_kernel', 256 + 204, 256)
    txt += '.p2align 6\n'
    txt += descriptor('hh_k2_kernel', 248, 248)
    txt += '.p2align 6\n'
    txt += descriptor('hh_k3_kernel', 144 + 252, 144)
    open(out, 'w').write(txt)
    print('instrs', g.nins, 'nops', g.nops)


if __name__ == '__main__':
    main(sys.argv[1] if len(sys.argv) > 1 else 'cdna_kernels/%s.s' % NAME)
```

```python
import sys
from asmgen import Gen, vr, ar, sr

NAME = 'gated_mix__linear_kernel_hedgehog__linear_kernel_hedgehog__prompt'

WS_PQ01 = 0
WS_PQ2 = 4 << 20
WS_PART = 5 << 20
WS_G = 8 << 20
WS_WOF = 9 << 20
WS_OF = 11 << 20
WS_SIZE = 32 << 20
OOB = 0x40000000
LOG2E = 0x3fb8aa3b

PITCH = 448
PHIP = 296


STAMP = False
WS_STAMP = 16 << 20


def stamp(g, idx, vS, real=False):
    if not STAMP:
        return
    g.I('s_waitcnt lgkmcnt(0)')
    g.lgq = []
    g.I('%s s[96:97]' % ('s_memrealtime' if real else 's_memtime'))
    g.I('s_waitcnt lgkmcnt(0)')
    g.I('v_writelane_b32 %s, s96, %d' % (vr(vS), idx))


def stamp_store(g, vS, vTmp, kidx, wpw):
    if not STAMP:
        return
    g.I('s_mul_i32 s96, s2, %d' % (wpw * 256))
    g.I('s_add_u32 s96, s96, 0x%x' % (WS_STAMP + kidx * (1 << 20)))
    g.I('v_lshlrev_b32 %s, 2, v0' % vr(vTmp))
    g.I('buffer_store_dword %s, %s, s[16:19], s96 offen' % (vr(vS), vr(vTmp)), vm='st')


def load_ptrs(g):
    g.I('s_load_dwordx16 s[36:51], s[0:1], 0')
    g.I('s_load_dwordx8 s[52:59], s[0:1], 64')


def srd(g, d, lo, nbytes):
    g.I('s_mov_b32 s%d, s%d' % (d, lo))
    g.I('s_and_b32 s%d, s%d, 0xffff' % (d + 1, lo + 1))
    g.I('s_mov_b32 s%d, 0x%x' % (d + 2, nbytes))
    g.I('s_mov_b32 s%d, 0x20000' % (d + 3))


def softmax_exps(g, P, EP, EN, T, sC):
    mx, mn = T, T + 2
    g.I('v_max3_f32 %s, %s, %s, %s' % (vr(mx), vr(P), vr(P + 1), vr(P + 2)))
    g.I('v_min3_f32 %s, %s, %s, %s' % (vr(mn), vr(P), vr(P + 1), vr(P + 2)))
    for k in range(3, 17, 2):
        g.I('v_max3_f32 %s, %s, %s, %s' % (vr(mx), vr(mx), vr(P + k), vr(P + k + 1)))
        g.I('v_min3_f32 %s, %s, %s, %s' % (vr(mn), vr(mn), vr(P + k), vr(P + k + 1)))
    g.I('v_max_f32 %s, %s, %s' % (vr(mx), vr(mx), vr(P + 17)))
    g.I('v_min_f32 %s, %s, %s' % (vr(mn), vr(mn), vr(P + 17)))
    g.I('v_mul_f32 %s, s%d, %s' % (vr(mx), sC, vr(mx)))
    g.I('v_mul_f32 %s, s%d, %s' % (vr(mn), sC, vr(mn)))
    for k in range(0, 18, 2):
        g.I('v_pk_fma_f32 %s, %s, %s, %s op_sel_hi:[1,1,0] neg_lo:[0,0,1] neg_hi:[0,0,1]' % (
            vr(EP + k, 2), vr(P + k, 2), sr(sC, 2), vr(mx, 2)))
        g.I('v_pk_fma_f32 %s, %s, %s, %s op_sel_hi:[1,1,0] neg_lo:[1,0,0] neg_hi:[1,0,0]' % (
            vr(EN + k, 2), vr(P + k, 2), sr(sC, 2), vr(mn, 2)))
    for k in range(18):
        g.I('v_exp_f32 %s, %s' % (vr(EP + k), vr(EP + k)))
        g.I('v_exp_f32 %s, %s' % (vr(EN + k), vr(EN + k)))


WSLOT = 32 * PITCH
NW = 7
XBASE = NW * WSLOT
XSLOT = 16384
NX = 3
TBL = XBASE + NX * XSLOT
K1_LDS = TBL + 4 * 1920
PHI = 4 * WSLOT
VBUF = XBASE


def k1(g):
    ACC = 16
    RING = 80
    NR = 8
    D = 4
    XF = 112
    vA = 128
    vXr = 134
    vWd = 136
    vXd = 137
    vLane, vG, vI, vR, vC = 1, 2, 3, 4, 5
    vGoff, vWOst = 6, 7
    vT = 8
    vS = 139
    GX = 144
    GW = 154
    WP = 144
    WO = 164
    WO2 = 172
    WPA = 0

    g.raw('.p2align 8')
    g.label('hh_k1_kernel')
    g.I('s_cmp_ge_u32 s2, 256')
    g.I('s_cbranch_scc1 K1_END')
    load_ptrs(g)
    stamp(g, 0, vS)
    stamp(g, 1, vS, True)
    g.I('s_and_b32 s65, s2, 7')
    g.I('s_lshr_b32 s66, s2, 3')
    g.I('s_and_b32 s60, s65, 1')
    g.I('s_lshl_b32 s60, s60, 3')
    g.I('s_and_b32 s67, s66, 7')
    g.I('s_add_u32 s60, s60, s67')
    g.I('s_lshr_b32 s61, s65, 1')
    g.I('s_lshl_b32 s61, s61, 2')
    g.I('s_lshr_b32 s67, s66, 3')
    g.I('s_add_u32 s61, s61, s67')
    g.I('s_lshr_b32 s62, s61, 3')
    g.I('s_and_b32 s63, s61, 7')
    g.I('v_and_b32 %s, 63, v0' % vr(vLane))
    g.I('v_lshrrev_b32 %s, 6, v0' % vr(vT))
    g.I('v_lshrrev_b32 %s, 4, %s' % (vr(vG), vr(vLane)))
    g.I('v_readfirstlane_b32 s64, %s' % vr(vT))
    g.I('v_and_b32 %s, 15, %s' % (vr(vI), vr(vLane)))
    g.I('v_lshrrev_b32 %s, 2, %s' % (vr(vR), vr(vI)))
    g.I('v_and_b32 %s, 3, %s' % (vr(vC), vr(vI)))
    g.I('s_and_b32 s94, s64, 3')
    g.I('s_lshr_b32 s95, s64, 2')
    g.I('s_mov_b32 s75, 0x%x' % OOB)
    g.I('v_lshrrev_b32 %s, 3, %s' % (vr(vT), vr(vLane)))
    g.I('v_and_b32 %s, 7, %s' % (vr(vT + 1), vr(vLane)))
    g.I('v_lshrrev_b32 %s, 1, %s' % (vr(vT + 2), vr(vT)))
    g.I('v_xor_b32 %s, %s, %s' % (vr(vT + 1), vr(vT + 1), vr(vT + 2)))
    g.I('v_mul_u32_u24 %s, 1152, %s' % (vr(vT), vr(vT)))
    g.I('v_lshl_add_u32 %s, %s, 4, %s' % (vr(vXd), vr(vT + 1), vr(vT)))
    g.I('v_xor_b32 %s, 64, %s' % (vr(vXd + 1), vr(vXd)))
    g.I('v_add_u32 %s, %d, %s' % (vr(vXd + 1), 8 * 1152, vr(vXd + 1)))
    g.I('s_lshl_b32 s70, s60, 7')
    g.I('s_lshl_b32 s67, s64, 4')
    g.I('s_add_u32 s70, s70, s67')
    g.I('s_mul_i32 s70, s70, 1152')
    g.I('s_lshl_b32 s71, s64, 11')
    g.I('s_add_u32 s71, s71, %d' % XBASE)
    g.I('s_waitcnt lgkmcnt(0)')
    srd(g, 8, 36, 2048 * 1152)
    g.I('s_cmp_eq_u32 s62, 0')
    g.I('s_cselect_b64 s[4:5], s[38:39], s[46:47]')
    g.I('s_cselect_b64 s[6:7], s[40:41], s[48:49]')
    srd(g, 12, 4, 576 * 3456)

    def xdma(cx, e):
        g.I('s_add_u32 m0, s71, %d' % ((cx % NX) * XSLOT + e * 1024))
        g.I('s_add_u32 s76, s70, %d' % (cx * 128))
        g.I('buffer_load_dwordx4 %s, s[8:11], s76 offen lds' % vr(vXd + e), vm=('x', cx))

    xdma(0, 0)
    xdma(0, 1)
    tbl = 0
    for v_, val in enumerate([4, 1, 3, 0, 2, 4, 1, 3, 0]):
        tbl |= val << (3 * v_)
    g.I('s_mov_b32 s74, 0x%x' % tbl)
    g.I('s_mul_i32 s69, s63, 144')
    g.I('s_bfe_u32 s67, s64, 0x10001')
    rho, pp, part, q, t2 = vT, vT + 1, vT + 2, vT + 3, vT + 4
    g.I('v_cmp_le_u32 vcc, 28, %s' % vr(vLane))
    g.I('v_cndmask_b32 %s, 0, 1, vcc' % vr(rho))
    g.I('v_mul_u32_u24 %s, 28, %s' % (vr(pp), vr(rho)))
    g.I('v_sub_u32 %s, %s, %s' % (vr(pp), vr(vLane), vr(pp)))
    g.I('v_subrev_u32 %s, s67, %s' % (vr(pp), vr(pp)))
    g.I('v_mul_u32_u24 %s, 57, %s' % (vr(part), vr(pp)))
    g.I('v_lshrrev_b32 %s, 9, %s' % (vr(part), vr(part)))
    g.I('v_mul_u32_u24 %s, 9, %s' % (vr(q), vr(part)))
    g.I('v_sub_u32 %s, %s, %s' % (vr(q), vr(pp), vr(q)))
    g.I('v_mul_u32_u24 %s, 3, %s' % (vr(t2), vr(q)))
    g.I('v_lshrrev_b32 %s, %s, s74' % (vr(t2), vr(t2)))
    g.I('v_and_b32 %s, 7, %s' % (vr(t2), vr(t2)))
    g.I('v_add3_u32 %s, %s, %s, -2' % (vr(t2), vr(t2), vr(q)))
    g.I('v_cmp_eq_u32 vcc, 2, %s' % vr(part))
    g.I('v_cndmask_b32 %s, %s, %s, vcc' % (vr(q), vr(q), vr(t2)))
    g.I('v_mul_u32_u24 %s, 3456, %s' % (vr(rho), vr(rho)))
    g.I('v_mul_u32_u24 %s, 1152, %s' % (vr(part), vr(part)))
    g.I('v_lshl_add_u32 %s, %s, 4, %s' % (vr(q), vr(q), vr(rho)))
    g.I('v_add3_u32 %s, %s, %s, s69' % (vr(q), vr(q), vr(part)))
    g.I('v_cmp_lt_u32 vcc, 26, %s' % vr(pp))
    g.I('v_mov_b32 %s, s75' % vr(t2))
    g.I('v_cndmask_b32 %s, %s, %s, vcc' % (vr(vWd), vr(q), vr(t2)))
    g.I('s_mul_i32 s77, s64, 4*%d' % PITCH)
    g.I('s_mul_i32 s78, s64, 4*3456')
    g.I('s_mov_b32 s80, -1')
    g.I('s_mov_b32 s81, 0x00ffffff')

    def wdma(s):
        g.I('s_mov_b64 exec, s[80:81]')
        for j in range(2):
            g.I('s_add_u32 m0, s77, %d' % ((s % NW) * WSLOT + 2 * j * PITCH))
            g.I('s_add_u32 s76, s78, %d' % ((32 * s + 2 * j) * 3456))
            g.I('buffer_load_dwordx4 %s, s[12:15], s76 offen lds' % vr(vWd), vm=('w', s))
        g.I('s_mov_b64 exec, -1')

    wdma(0)
    wdma(1)
    xdma(1, 0)
    xdma(1, 1)
    wdma(2)
    wdma(3)
    srd(g, 16, 58, WS_SIZE)
    g.I('s_mov_b32 s72, 0x%x' % LOG2E)
    g.I('s_mov_b32 s73, 0x%x' % LOG2E)
    g.I('s_mov_b32 s86, %d' % TBL)
    g.I('s_lshl_b32 s68, s60, 7')
    g.I('s_lshl_b32 s67, s94, 5')
    g.I('s_add_u32 s68, s68, s67')
    g.I('v_lshrrev_b32 %s, 1, %s' % (vr(vT), vr(vI)))
    g.I('v_xor_b32 %s, %s, %s' % (vr(vT), vr(vT), vr(vG)))
    g.I('v_lshlrev_b32 %s, 4, %s' % (vr(vT), vr(vT)))
    g.I('v_lshl_add_u32 %s, %s, 7, %s' % (vr(vT), vr(vI), vr(vT)))
    g.I('s_lshl_b32 s67, s94, 12')
    g.I('s_add_u32 s67, s67, %d' % XBASE)
    g.I('v_add_u32 %s, s67, %s' % (vr(vXr), vr(vT)))
    g.I('v_xor_b32 %s, 64, %s' % (vr(vXr + 1), vr(vXr)))
    g.I('v_lshl_add_u32 %s, %s, 3, %s' % (vr(vT), vr(vG), vr(vR)))
    g.I('v_mul_u32_u24 %s, %d, %s' % (vr(vT), PITCH, vr(vT)))
    g.I('v_and_b32 %s, 1, %s' % (vr(vT + 1), vr(vG)))
    g.I('v_lshl_add_u32 %s, %s, 4, %s' % (vr(vT), vr(vT + 1), vr(vT)))
    g.I('v_lshlrev_b32 %s, 3, %s' % (vr(vT + 1), vr(vC)))

    def tabsel(dst, vals, add):
        packed = 0
        for k_, v_ in enumerate(vals):
            packed |= v_ << (8 * k_)
        g.I('s_mov_b32 s67, 0x%x' % packed)
        g.I('v_lshrrev_b32 %s, %s, s67' % (vr(vT + 2), vr(vT + 1)))
        g.I('v_and_b32 %s, 0xff, %s' % (vr(vT + 2), vr(vT + 2)))
        g.I('v_add3_u32 %s, %s, %s, %d' % (vr(dst), vr(vT + 2), vr(vT), 0))
        if add:
            g.I('v_add_u32 %s, %d, %s' % (vr(dst), add, vr(dst)))
        g.I('v_add_u32 %s, %d, %s' % (vr(dst + 3), 4 * WSLOT, vr(dst)))

    g.I('s_cmp_eq_u32 s95, 1')
    g.I('s_cbranch_scc1 K1_ROLE1')
    save = (list(g.vmq), list(g.lgq), list(g.hist))

    def role(R):
        if R == 0:
            tabsel(vA + 0, [0, 32, 72, 104], 144)
            tabsel(vA + 1, [0, 136, 32, 104], 288)
            tabsel(vA + 2, [16, 24, 48, 56], 288)
            tiles = [('T', t, 0, 8 * t) for t in range(5)] + [('V', 4, 1, 0), ('V', 0, 2, 0)]
        else:
            tabsel(vA + 0, [0, 32, 72, 104], 0)
            tabsel(vA + 1, [8, 32, 40, 64], 288)
            tabsel(vA + 2, [16, 24, 48, 56], 288)
            tiles = [('T', t, 0, 8 * t) for t in range(5)] + [('V', 1, 1, 0), ('V', 2, 1, 64), ('V', 3, 2, 64)]
        nt = len(tiles)

        def acc(t, u):
            return ACC + (2 * t + u) * 4

        if R == 0:
            srd(g, 20, 6, 32 * 648)
            g.I('s_lshl_b32 s67, s63, 2')
            g.I('s_add_u32 s67, s67, s94')
            g.I('s_mul_i32 s67, s67, 648')
            g.I('v_mul_u32_u24 %s, 36, %s' % (vr(vT), vr(vLane)))
            g.I('v_add_u32 %s, s67, %s' % (vr(vT), vr(vT)))
            g.I('v_cmp_gt_u32 vcc, 18, %s' % vr(vLane))
            g.I('v_mov_b32 %s, s75' % vr(vT + 2))
            g.I('v_cndmask_b32 %s, %s, %s, vcc' % (vr(vT), vr(vT + 2), vr(vT)))
            g.I('buffer_load_dwordx4 %s, %s, s[20:23], 0 offen' % (vr(WP, 4), vr(vT)), vm='side')
            g.I('buffer_load_dwordx4 %s, %s, s[20:23], 0 offen offset:16' % (vr(WP + 4, 4), vr(vT)), vm='side')
            g.I('buffer_load_dword %s, %s, s[20:23], 0 offen offset:32' % (vr(WP + 8), vr(vT)), vm='side')
            g.I('s_lshl_b32 s79, s2, 2')
            g.I('s_add_u32 s79, s79, s94')
            g.I('s_mul_i32 s82, s79, 52429')
            g.I('s_lshr_b32 s82, s82, 18')
            g.I('s_mul_i32 s67, s82, 5')
            g.I('s_sub_u32 s83, s79, s67')
            g.I('s_cmp_ge_u32 s82, 72')
            g.I('s_cselect_b64 s[4:5], s[50:51], s[42:43]')
            g.I('s_cselect_b32 s67, 72, 0')
            g.I('s_sub_u32 s84, s82, s67')
            srd(g, 24, 4, 576 * 1152)
            g.I('s_lshr_b32 s85, s84, 1')
            g.I('s_mul_i32 s85, s85, 18')
            g.I('s_and_b32 s67, s84, 1')
            g.I('s_lshl_b32 s67, s67, 3')
            g.I('s_add_u32 s85, s85, s67')
            g.I('s_sub_u32 s87, s84, 64')
            g.I('s_mul_i32 s87, s87, 72')
            g.I('s_add_u32 s87, s87, 16')
            g.I('s_cmp_lt_u32 s84, 64')
            g.I('s_cselect_b32 s85, s85, s87')
            g.I('s_mul_i32 s85, s85, 1152')
            g.I('s_lshl_b32 s67, s83, 6')
            g.I('v_add_u32 %s, s67, %s' % (vr(vT), vr(vLane)))
            g.I('v_lshlrev_b32 %s, 2, %s' % (vr(vT + 1), vr(vT)))
            g.I('s_mul_i32 s87, s82, 576*16')
            g.I('s_add_u32 s87, s87, 0x%x' % WS_WOF)
            g.I('v_lshl_add_u32 %s, %s, 5, s87' % (vr(vT + 3), vr(vT)))
            g.I('s_movk_i32 s67, 288')
            g.I('s_cmp_lt_u32 s79, 720')
            g.I('s_cselect_b32 s67, s67, 0')
            g.I('v_cmp_gt_u32 vcc, s67, %s' % vr(vT))
            g.I('v_mov_b32 %s, s75' % vr(vT + 2))
            g.I('v_cndmask_b32 %s, %s, %s, vcc' % (vr(vT + 1), vr(vT + 2), vr(vT + 1)))
            g.I('v_cndmask_b32 %s, %s, %s, vcc' % (vr(vWOst), vr(vT + 2), vr(vT + 3)))
            for j in range(8):
                g.I('s_cmp_lt_u32 s84, 64')
                g.I('s_movk_i32 s67, %d' % (j * 1152))
                g.I('s_cselect_b32 s67, s67, %d' % ((18 * (j >> 1) + (j & 1)) * 1152))
                g.I('s_add_u32 s67, s67, s85')
                g.I('buffer_load_dword %s, %s, s[24:27], s67 offen' % (vr(WO + j), vr(vT + 1)), vm='side')
        else:
            srd(g, 28, 52, 1152)
            g.I('s_lshl_b32 s79, s60, 7')
            g.I('s_lshl_b32 s67, s61, 3')
            g.I('s_add_u32 s79, s79, s67')
            g.I('s_lshl_b32 s67, s94, 1')
            g.I('s_add_u32 s79, s79, s67')
            g.I('v_lshrrev_b32 %s, 5, %s' % (vr(vT), vr(vLane)))
            g.I('v_add_u32 %s, s79, %s' % (vr(vT), vr(vT)))
            g.I('v_and_b32 %s, 31, %s' % (vr(vT + 1), vr(vLane)))
            g.I('v_mul_u32_u24 %s, 36, %s' % (vr(vT + 2), vr(vT + 1)))
            g.I('v_mul_u32_u24 %s, 1152, %s' % (vr(vT + 3), vr(vT)))
            g.I('v_add_u32 %s, %s, %s' % (vr(vT + 3), vr(vT + 3), vr(vT + 2)))
            g.I('buffer_load_dwordx4 %s, %s, s[8:11], 0 offen' % (vr(GX, 4), vr(vT + 3)), vm='side')
            g.I('buffer_load_dwordx4 %s, %s, s[8:11], 0 offen offset:16' % (vr(GX + 4, 4), vr(vT + 3)), vm='side')
            g.I('buffer_load_dword %s, %s, s[8:11], 0 offen offset:32' % (vr(GX + 8), vr(vT + 3)), vm='side')
            g.I('buffer_load_dwordx4 %s, %s, s[28:31], 0 offen' % (vr(GW, 4), vr(vT + 2)), vm='side')
            g.I('buffer_load_dwordx4 %s, %s, s[28:31], 0 offen offset:16' % (vr(GW + 4, 4), vr(vT + 2)), vm='side')
            g.I('buffer_load_dword %s, %s, s[28:31], 0 offen offset:32' % (vr(GW + 8), vr(vT + 2)), vm='side')
            g.I('v_lshlrev_b32 %s, 2, %s' % (vr(vT), vr(vT)))
            g.I('v_add_u32 %s, 0x%x, %s' % (vr(vT), WS_G, vr(vT)))
            g.I('v_cmp_eq_u32 vcc, 0, %s' % vr(vT + 1))
            g.I('v_mov_b32 %s, s75' % vr(vT + 2))
            g.I('v_cndmask_b32 %s, %s, %s, vcc' % (vr(vGoff), vr(vT + 2), vr(vT)))
        xdma(2, 0)
        xdma(2, 1)
        wdma(4)
        wdma(5)
        wdma(6)

        def side_jobs():
            g.wait_vm('side')
            if R == 1:
                g.I('v_mov_b32 %s, 0' % vr(vT))
                for k_ in range(9):
                    g.I('v_dot2_f32_bf16 %s, %s, %s, %s' % (vr(vT), vr(GX + k_), vr(GW + k_), vr(vT)))
                g.I('s_nop 3')
                for pat in ('quad_perm:[1,0,3,2]', 'quad_perm:[2,3,0,1]', 'row_half_mirror', 'row_mirror'):
                    g.I('v_add_f32_dpp %s, %s, %s %s row_mask:0xf bank_mask:0xf' % (vr(vT), vr(vT), vr(vT), pat))
                g.I('ds_swizzle_b32 %s, %s offset:0x401F' % (vr(vT + 1), vr(vT)), lg='sw')
                g.wait_lg('sw')
                g.I('v_add_f32 %s, %s, %s' % (vr(vT), vr(vT), vr(vT + 1)))
                g.I('v_mul_f32 %s, s72, %s' % (vr(vT), vr(vT)))
                g.I('v_exp_f32 %s, -%s' % (vr(vT), vr(vT)))
                g.I('v_add_f32 %s, 1.0, %s' % (vr(vT), vr(vT)))
                g.I('v_rcp_f32 %s, %s' % (vr(vT), vr(vT)))
                g.I('s_nop 0')
                g.I('buffer_store_dword %s, %s, s[16:19], 0 offen' % (vr(vT), vr(vGoff)), vm='st')
            else:
                for k_ in range(4):
                    g.I('v_mov_b32 %s, 0' % vr(vT + 4 + k_))
                g.I('s_mul_i32 s67, s94, 1920')
                g.I('s_add_u32 s67, s67, %d' % TBL)
                g.I('v_min_u32 %s, 59, %s' % (vr(vT + 2), vr(vLane)))
                g.I('v_lshl_add_u32 %s, %s, 4, s67' % (vr(vT + 2), vr(vT + 2)))
                g.wait_lg_all()
                g.I('ds_write_b128 %s, %s' % (vr(vT + 2), vr(vT + 4, 4)), lg='z')
                g.I('ds_write_b128 %s, %s offset:960' % (vr(vT + 2), vr(vT + 4, 4)), lg='z')
                g.I('s_and_b32 s85, s94, 1')
                g.I('s_lshl_b32 s85, s85, 1')
                g.I('v_add_u32 %s, s85, %s' % (vr(vT + 2), vr(vLane)))
                g.I('v_lshrrev_b32 %s, 3, %s' % (vr(vT + 3), vr(vT + 2)))
                g.I('v_and_b32 %s, 7, %s' % (vr(vT + 2), vr(vT + 2)))
                g.I('v_lshlrev_b32 %s, 1, %s' % (vr(vT + 2), vr(vT + 2)))
                g.I('v_lshl_add_u32 %s, %s, 6, %s' % (vr(vT + 2), vr(vT + 3), vr(vT + 2)))
                g.I('v_add_u32 %s, s67, %s' % (vr(vT + 2), vr(vT + 2)))
                g.I('s_mov_b64 exec, 0x3ffff')
                for f in range(18):
                    off = (f >> 2) * 192 + (f & 3) * 16
                    op = 'ds_write_b16_d16_hi' if (f & 1) else 'ds_write_b16'
                    g.I('%s %s, %s offset:%d' % (op, vr(vT + 2), vr(WP + f // 2), off), lg='z')
                    if f == 11:
                        g.wait_lg_all()
                g.I('s_mov_b64 exec, -1')
                g.I('s_mov_b32 s67, 0x05040100')
                g.I('s_mov_b32 s85, 0x07060302')
                for m in range(4):
                    g.I('v_perm_b32 %s, %s, %s, s67' % (vr(WO2 + m), vr(WO + 2 * m + 1), vr(WO + 2 * m)))
                    g.I('v_perm_b32 %s, %s, %s, s85' % (vr(WO2 + 4 + m), vr(WO + 2 * m + 1), vr(WO + 2 * m)))
                g.I('buffer_store_dwordx4 %s, %s, s[16:19], 0 offen' % (vr(WO2, 4), vr(vWOst)), vm='st')
                g.I('buffer_store_dwordx4 %s, %s, s[16:19], 0 offen offset:16' % (vr(WO2 + 4, 4), vr(vWOst)), vm='st')
                g.wait_lg_all()

        def wphi_frags():
            g.I('v_lshlrev_b32 %s, 4, %s' % (vr(vT), vr(vC)))
            g.I('v_mov_b32 %s, 960' % vr(vT + 1))
            g.I('v_cmp_eq_u32 vcc, %s, %s' % (vr(vR), vr(vG)))
            g.I('v_cndmask_b32 %s, %s, %s, vcc' % (vr(vT), vr(vT + 1), vr(vT)))
            g.I('v_mul_u32_u24 %s, 1920, %s' % (vr(vT + 1), vr(vG)))
            g.I('v_add3_u32 %s, %s, %s, s86' % (vr(vT), vr(vT), vr(vT + 1)))
            g.wait_lg_all()
            for f in range(15):
                g.I('ds_read_b128 %s, %s offset:%d' % (ar(WPA + 4 * f, 4), vr(vT), f * 64), lg='wpf')
            g.wait_lg_all()

        def frag_reads(n):
            s, ti = divmod(n, nt)
            kind, idx, ai, off = tiles[ti]
            slot = s % NW
            va = vA + ai + (3 if slot >= 4 else 0)
            so = (slot - 4 if slot >= 4 else slot) * WSLOT
            Rr = RING + (n % NR) * 4
            for h in range(2):
                g.I('ds_read_b64_tr_b16 %s, %s offset:%d' % (vr(Rr + 2 * h, 2), vr(va), so + h * 4 * PITCH + off),
                    lg=('f', n))

        def x_reads(s):
            cx, e = divmod(s, 2)
            for u in range(2):
                g.I('ds_read_b128 %s, %s offset:%d' % (vr(XF + ((s & 1) * 2 + u) * 4, 4), vr(vXr + e),
                                                       (cx % NX) * XSLOT + u * 2048), lg=('xf', s))

        def frag_mfma(n):
            s, ti = divmod(n, nt)
            kind = tiles[ti][0]
            Rr = RING + (n % NR) * 4
            for u in range(2):
                A = acc(ti, u)
                xa = vr(XF + ((s & 1) * 2 + u) * 4, 4)
                cc = '0' if s == 0 else vr(A, 4)
                if kind == 'T':
                    g.I('v_mfma_f32_16x16x32_bf16 %s, %s, %s, %s' % (vr(A, 4), vr(Rr, 4), xa, cc))
                else:
                    g.I('v_mfma_f32_16x16x32_bf16 %s, %s, %s, %s' % (vr(A, 4), xa, vr(Rr, 4), cc))

        NF = 18 * nt
        stamp(g, 2, vS)
        g.wait_vm(('w', 0))
        g.I('s_barrier')
        stamp(g, 3, vS)
        x_reads(0)
        for n in range(D):
            frag_reads(n)
        for n in range(NF):
            s, ti = divmod(n, nt)
            if ti == 2 and s < 17:
                if s == 5:
                    side_jobs()
                g.wait_vm(('w', s + 1))
                if (s + 1) % 2 == 0:
                    g.wait_vm(('x', (s + 1) // 2))
                g.I('s_barrier')
                if s % 2 == 1:
                    stamp(g, 4 + s // 2, vS)
                x_reads(s + 1)
                if s == 8:
                    wphi_frags()
                if s >= 1 and s + 6 < 18:
                    wdma(s + 6)
            if ti == 4 and s >= 1:
                cx3 = (s - 1) // 2 + 3
                if cx3 < 9:
                    xdma(cx3, (s - 1) % 2)
            if ti == 0:
                g.wait_lg(('xf', s))
            g.wait_lg(('f', n))
            frag_mfma(n)
            if n + D < NF:
                frag_reads(n + D)

        stamp(g, 12, vS)
        PK = 80
        P = 92
        EP = 144
        EN = 162
        T4 = 180
        OUT = 112
        vPQ, vPQ2, vPhiW, vVb = 130, 131, 132, 133
        g.I('v_mov_b32 %s, 0' % vr(PK + 10))
        g.I('v_mov_b32 %s, 0' % vr(PK + 11))
        g.I('s_lshl_b32 s87, s61, 2')

        def phi_proj(u):
            for m in range(10):
                t, r_ = m >> 1, (m & 1) * 2
                g.I('v_cvt_pk_bf16_f32 %s, %s, %s' % (vr(PK + m), vr(acc(t, u) + r_), vr(acc(t, u) + r_ + 1)))
            for ic in range(3):
                for oc in range(5):
                    cc = '0' if ic == 0 else vr(P + 4 * oc, 4)
                    g.I('v_mfma_f32_16x16x32_bf16 %s, %s, %s, %s' % (
                        vr(P + 4 * oc, 4), ar(WPA + (oc * 3 + ic) * 4, 4), vr(PK + 4 * ic, 4), cc))

        g.I('s_mul_i32 s67, s94, 5120')
        g.I('s_add_u32 s67, s67, %d' % VBUF)
        g.I('v_lshl_add_u32 %s, %s, 4, s67' % (vr(vVb), vr(vLane)))
        for ti in range(5, nt):
            b = tiles[ti][1]
            O = OUT + (ti % 2) * 4
            for u in range(2):
                for hlf in range(2):
                    g.I('v_cvt_pk_bf16_f32 %s, %s, %s' % (vr(O + 2 * u + hlf), vr(acc(ti, u) + 2 * hlf),
                                                          vr(acc(ti, u) + 2 * hlf + 1)))
            if b == 4:
                g.I('v_cmp_lt_u32 vcc, 7, %s' % vr(vI))
                g.I('v_mov_b32 %s, 0x3f803f80' % vr(vT + 4))
                for k_ in range(4):
                    g.I('v_cndmask_b32 %s, %s, %s, vcc' % (vr(O + k_), vr(O + k_), vr(vT + 4)))
            g.I('ds_write_b128 %s, %s offset:%d' % (vr(vVb), vr(O, 4), b * 1024), lg='v')
            if ti == 6:
                g.wait_lg_all()
        g.wait_lg_all()
        if R == 1:
            g.I('v_lshl_add_u32 %s, %s, 12, %s' % (vr(vT + 2), vr(vG), vr(vI)))
            g.I('v_lshlrev_b32 %s, 4, %s' % (vr(vPQ), vr(vT + 2)))
            g.I('v_lshl_add_u32 %s, %s, 11, %s' % (vr(vT + 2), vr(vG), vr(vI)))
            g.I('v_lshlrev_b32 %s, 2, %s' % (vr(vPQ2), vr(vT + 2)))
            g.I('s_lshl_b32 s88, s87, 12')
            g.I('s_add_u32 s88, s88, s68')
            g.I('s_lshl_b32 s88, s88, 4')
            g.I('s_add_u32 s89, s88, 32768')
            g.I('s_lshl_b32 s90, s87, 11')
            g.I('s_add_u32 s90, s90, s68')
            g.I('s_lshl_b32 s90, s90, 2')
            g.I('s_add_u32 s90, s90, 0x%x' % WS_PQ2)
            for u in range(2):
                phi_proj(u)
                O = (EP if u else OUT)
                for m in range(9):
                    g.I('v_cvt_pk_bf16_f32 %s, %s, %s' % (vr(O + m), vr(P + 2 * m), vr(P + 2 * m + 1)))
                g.I('buffer_store_dwordx4 %s, %s, s[16:19], s88 offen offset:%d' % (vr(O, 4), vr(vPQ), u * 256), vm='st')
                g.I('buffer_store_dwordx4 %s, %s, s[16:19], s89 offen offset:%d' % (vr(O + 4, 4), vr(vPQ), u * 256), vm='st')
                g.I('buffer_store_dword %s, %s, s[16:19], s90 offen offset:%d' % (vr(O + 8), vr(vPQ2), u * 64), vm='st')
        else:
            g.I('s_lshl_b32 s67, s94, 5')
            g.I('v_add_u32 %s, s67, %s' % (vr(vT + 4), vr(vI)))
            g.I('v_mul_u32_u24 %s, %d, %s' % (vr(vT + 4), PHIP, vr(vT + 4)))
            g.I('v_mul_u32_u24 %s, 72, %s' % (vr(vT + 5), vr(vG)))
            g.I('v_add_u32 %s, %s, %s' % (vr(vPhiW), vr(vT + 4), vr(vT + 5)))
            g.I('v_add_u32 %s, %d, %s' % (vr(vPhiW), PHI, vr(vPhiW)))
            for u in range(2):
                phi_proj(u)
                softmax_exps(g, P, EP, EN, T4, 72)
                for E in (EP, EN):
                    S = T4 + 4
                    g.I('v_pk_add_f32 %s, %s, %s' % (vr(S, 2), vr(E, 2), vr(E + 2, 2)))
                    for k_ in range(4, 18, 2):
                        g.I('v_pk_add_f32 %s, %s, %s' % (vr(S, 2), vr(S, 2), vr(E + k_, 2)))
                    g.I('v_add_f32 %s, %s, %s' % (vr(S), vr(S), vr(S + 1)))
                    g.I('v_rcp_f32 %s, %s' % (vr(S), vr(S)))
                    for k_ in range(0, 18, 2):
                        g.I('v_pk_mul_f32 %s, %s, %s op_sel_hi:[1,0]' % (vr(E + k_, 2), vr(E + k_, 2), vr(S, 2)))
                g.wait_lg_all()
                for m in range(9):
                    g.I('v_cvt_pk_bf16_f32 %s, %s, %s' % (vr(OUT + m), vr(EP + 2 * m), vr(EP + 2 * m + 1)))
                    g.I('v_cvt_pk_bf16_f32 %s, %s, %s' % (vr(OUT + 9 + m), vr(EN + 2 * m), vr(EN + 2 * m + 1)))
                for m in range(9):
                    g.I('ds_write_b64 %s, %s offset:%d' % (vr(vPhiW), vr(OUT + 2 * m, 2), u * 16 * PHIP + 8 * m), lg='phi')
        stamp(g, 14, vS)
        g.wait_lg_all()
        g.I('s_barrier')
        stamp(g, 15, vS)
        vPhiR, vVr, vO0, vO2 = 130, 131, 132, 133
        g.I('v_lshl_add_u32 %s, %s, 2, %s' % (vr(vT + 4), vr(vG), vr(vR)))
        g.I('v_mul_u32_u24 %s, %d, %s' % (vr(vT + 4), PHIP, vr(vT + 4)))
        g.I('v_lshl_add_u32 %s, %s, 3, %s' % (vr(vT + 4), vr(vC), vr(vT + 4)))
        g.I('s_mul_i32 s67, s94, 72')
        g.I('s_add_u32 s67, s67, %d' % PHI)
        g.I('v_add_u32 %s, s67, %s' % (vr(vPhiR), vr(vT + 4)))
        if R == 0:
            g.I('s_lshl_b32 s67, s94, 10')
            g.I('s_add_u32 s67, s67, %d' % VBUF)
        else:
            g.I('s_mov_b32 s67, %d' % (VBUF + 4096))
        g.I('v_lshl_add_u32 %s, %s, 4, s67' % (vr(vVr), vr(vLane)))
        KV = 16
        AF = 32
        BF = 80
        for ksw in range(4):
            for a_ in range(3):
                for h in range(2):
                    g.I('ds_read_b64_tr_b16 %s, %s offset:%d' % (
                        vr(AF + ksw * 12 + a_ * 4 + 2 * h, 2), vr(vPhiR), (32 * ksw + 16 * h) * PHIP + 32 * a_),
                        lg=('kv', ksw))
            g.I('ds_read_b128 %s, %s offset:%d' % (vr(BF + ksw * 4, 4), vr(vVr), ksw * 5120), lg=('kv', ksw))
            if ksw >= 1:
                g.wait_lg(('kv', ksw - 1))
                for a_ in range(3):
                    Dr = KV + a_ * 4
                    cc = '0' if ksw == 1 else vr(Dr, 4)
                    g.I('v_mfma_f32_16x16x32_bf16 %s, %s, %s, %s' % (
                        vr(Dr, 4), vr(AF + (ksw - 1) * 12 + a_ * 4, 4), vr(BF + (ksw - 1) * 4, 4), cc))
        g.I('s_and_b32 s85, s94, 1')
        g.I('s_lshl_b32 s85, s85, 1')
        g.I('v_mul_u32_u24 %s, 20, %s' % (vr(vT + 4), vr(vG)))
        g.I('v_mov_b32 %s, s75' % vr(vT + 6))
        if R == 0:
            g.I('v_add3_u32 %s, %s, %s, s85' % (vr(vT + 5), vr(vT + 4), vr(vI)))
            g.I('v_lshlrev_b32 %s, 4, %s' % (vr(vO0), vr(vT + 5)))
        else:
            g.I('s_cmp_eq_u32 s85, 0')
            g.I('s_cselect_b32 s67, 16, 0')
            g.I('v_and_b32 %s, 1, %s' % (vr(vT + 5), vr(vI)))
            g.I('v_add_u32 %s, s67, %s' % (vr(vT + 5), vr(vT + 5)))
            g.I('v_mov_b32 %s, 18' % vr(vT + 7))
            g.I('v_cmp_eq_u32 vcc, 8, %s' % vr(vI))
            g.I('v_cndmask_b32 %s, %s, %s, vcc' % (vr(vT + 5), vr(vT + 5), vr(vT + 7)))
            g.I('v_add_u32 %s, %s, %s' % (vr(vT + 5), vr(vT + 5), vr(vT + 4)))
            g.I('v_lshlrev_b32 %s, 4, %s' % (vr(vT + 5), vr(vT + 5)))
            g.I('v_lshrrev_b32 %s, 1, %s' % (vr(vT + 7), vr(vI)))
            g.I('v_cmp_eq_u32 s[92:93], s94, %s' % vr(vT + 7))
            g.I('s_or_b64 vcc, vcc, s[92:93]')
            g.I('v_cndmask_b32 %s, %s, %s, vcc' % (vr(vO0), vr(vT + 6), vr(vT + 5)))
        g.I('v_cmp_eq_u32 vcc, 0, %s' % vr(vG))
        g.I('v_cndmask_b32 %s, %s, %s, vcc' % (vr(vO2), vr(vT + 6), vr(vO0)))
        g.I('s_add_u32 s67, s87, s94')
        g.I('s_lshl_b32 s67, s67, 4')
        g.I('s_add_u32 s67, s67, s60')
        g.I('s_mul_i32 s67, s67, 3072')
        g.I('s_add_u32 s67, s67, 0x%x' % WS_PART)
        g.wait_lg(('kv', 3))
        for a_ in range(3):
            Dr = KV + a_ * 4
            g.I('v_mfma_f32_16x16x32_bf16 %s, %s, %s, %s' % (
                vr(Dr, 4), vr(AF + 3 * 12 + a_ * 4, 4), vr(BF + 3 * 4, 4), vr(Dr, 4)))
        for a_ in range(3):
            Dr = KV + a_ * 4
            vo = vO2 if a_ == 2 else vO0
            g.I('buffer_store_dwordx4 %s, %s, s[16:19], s67 offen offset:%d' % (vr(Dr, 4), vr(vo), a_ * 1280), vm='st')
        stamp(g, 16, vS)
        if STAMP:
            g.wait_vm_all()
        stamp(g, 17, vS)
        stamp(g, 18, vS, True)
        stamp_store(g, vS, vT, 0, 8)
        g.I('s_endpgm')

    role(0)
    g.label('K1_ROLE1')
    g.vmq, g.lgq, g.hist = list(save[0]), list(save[1]), list(save[2])
    role(1)
    g.label('K1_END')
    g.I('s_endpgm')
    g.reset_hist()
    g.vmq = []
    g.lgq = []


K2_LDS = 3840


def k2(g):
    g.raw('.p2align 8')
    g.label('hh_k2_kernel')
    g.I('s_cmp_ge_u32 s2, 256')
    g.I('s_cbranch_scc1 K2_END')
    stamp(g, 0, 18)
    stamp(g, 1, 18, True)
    g.I('s_load_dwordx2 s[58:59], s[0:1], 88')
    g.I('s_and_b32 s65, s2, 7')
    g.I('s_lshr_b32 s66, s2, 3')
    g.I('s_lshl_b32 s60, s65, 3')
    g.I('s_lshr_b32 s67, s66, 2')
    g.I('s_add_u32 s60, s60, s67')
    g.I('s_and_b32 s61, s66, 3')
    vLane, vG, vI, vT = 1, 2, 3, 4
    g.I('v_and_b32 %s, 63, v0' % vr(vLane))
    g.I('v_lshrrev_b32 %s, 6, v0' % vr(vT))
    g.I('v_lshrrev_b32 %s, 4, %s' % (vr(vG), vr(vLane)))
    g.I('v_readfirstlane_b32 s64, %s' % vr(vT))
    g.I('v_and_b32 %s, 15, %s' % (vr(vI), vr(vLane)))
    g.I('s_mov_b32 s72, 0x%x' % LOG2E)
    g.I('s_mov_b32 s73, 0x%x' % LOG2E)
    g.I('s_mov_b32 s75, 0x%x' % OOB)
    for k_ in range(4):
        g.I('v_mov_b32 %s, 0' % vr(vT + 4 + k_))
    g.I('v_min_u32 %s, 239, v0' % vr(vT))
    g.I('v_lshlrev_b32 %s, 4, %s' % (vr(vT), vr(vT)))
    g.I('ds_write_b128 %s, %s' % (vr(vT), vr(vT + 4, 4)), lg='z')
    g.I('s_lshl_b32 s68, s61, 9')
    g.I('v_add_u32 %s, s68, v0' % vr(vT + 1))
    vTok16, vTok4 = 16, 17
    g.I('v_lshlrev_b32 %s, 4, %s' % (vr(vTok16), vr(vT + 1)))
    g.I('v_lshlrev_b32 %s, 2, %s' % (vr(vTok4), vr(vT + 1)))
    g.I('s_waitcnt lgkmcnt(0)')
    g.lgq = []
    srd(g, 16, 58, WS_SIZE)
    PRT = 64
    PQ = 20
    g.I('s_cmp_ge_u32 s64, 3')
    g.I('s_cbranch_scc1 K2_NOPART')
    g.I('v_lshlrev_b32 %s, 4, v0' % vr(vT))
    g.I('v_mov_b32 %s, s75' % vr(vT + 2))
    g.I('v_cmp_gt_u32 vcc, 180, v0')
    g.I('v_cndmask_b32 %s, %s, %s, vcc' % (vr(vT), vr(vT + 2), vr(vT)))
    g.I('s_mul_i32 s67, s60, 16*3072')
    g.I('s_add_u32 s67, s67, 0x%x' % WS_PART)
    for tb in range(16):
        g.I('buffer_load_dwordx4 %s, %s, s[16:19], s67 offen' % (vr(PRT + 4 * tb, 4), vr(vT)), vm='p')
        if tb < 15:
            g.I('s_add_u32 s67, s67, 3072')
    g.label('K2_NOPART')
    g.I('s_lshl_b32 s69, s60, 16')
    g.I('s_add_u32 s70, s69, 32768')
    g.I('s_lshl_b32 s71, s60, 13')
    g.I('s_add_u32 s71, s71, 0x%x' % WS_PQ2)
    g.I('buffer_load_dwordx4 %s, %s, s[16:19], s69 offen' % (vr(PQ, 4), vr(vTok16)), vm='q')
    g.I('buffer_load_dwordx4 %s, %s, s[16:19], s70 offen' % (vr(PQ + 4, 4), vr(vTok16)), vm='q')
    g.I('buffer_load_dword %s, %s, s[16:19], s71 offen' % (vr(PQ + 8), vr(vTok4)), vm='q')
    g.I('s_barrier')
    stamp(g, 2, 18)
    g.wait_vm_all()
    stamp(g, 3, 18)
    g.I('s_cmp_ge_u32 s64, 3')
    g.I('s_cbranch_scc1 K2_NOTAB')
    for tb in range(1, 16):
        for k_ in range(0, 4, 2):
            g.I('v_pk_add_f32 %s, %s, %s' % (vr(PRT + k_, 2), vr(PRT + k_, 2), vr(PRT + 4 * tb + k_, 2)))
    fq, ds, a0, a1, t2 = vT, vT + 1, vT + 2, vT + 3, vT + 4
    g.I('v_mul_u32_u24 %s, 3277, v0' % vr(fq))
    g.I('v_lshrrev_b32 %s, 16, %s' % (vr(fq), vr(fq)))
    g.I('v_mul_u32_u24 %s, 20, %s' % (vr(ds), vr(fq)))
    g.I('v_sub_u32 %s, v0, %s' % (vr(ds), vr(ds)))
    g.I('v_cvt_pk_bf16_f32 %s, %s, %s' % (vr(PRT + 4), vr(PRT), vr(PRT + 1)))
    g.I('v_cvt_pk_bf16_f32 %s, %s, %s' % (vr(PRT + 5), vr(PRT + 2), vr(PRT + 3)))
    g.I('v_mov_b32 %s, 0x3f803f80' % vr(t2))
    g.I('v_cmp_eq_u32 vcc, 19, %s' % vr(ds))
    g.I('v_cndmask_b32 %s, %s, %s, vcc' % (vr(PRT + 4), vr(PRT + 4), vr(t2)))
    g.I('v_cndmask_b32 %s, %s, %s, vcc' % (vr(PRT + 5), vr(PRT + 5), vr(t2)))
    g.I('v_lshrrev_b32 %s, 2, %s' % (vr(a0), vr(ds)))
    g.I('v_mul_u32_u24 %s, 192, %s' % (vr(a0), vr(a0)))
    g.I('v_and_b32 %s, 3, %s' % (vr(t2), vr(ds)))
    g.I('v_lshl_add_u32 %s, %s, 4, %s' % (vr(a0), vr(t2), vr(a0)))
    g.I('v_lshrrev_b32 %s, 1, %s' % (vr(t2), vr(fq)))
    g.I('v_lshl_add_u32 %s, %s, 6, %s' % (vr(a0), vr(t2), vr(a0)))
    g.I('v_and_b32 %s, 1, %s' % (vr(t2), vr(fq)))
    g.I('v_lshl_add_u32 %s, %s, 3, %s' % (vr(a0), vr(t2), vr(a0)))
    g.I('v_add_u32 %s, 4, %s' % (vr(a1), vr(a0)))
    g.I('v_add_u32 %s, 832, %s' % (vr(t2), vr(a0)))
    g.I('v_cmp_lt_u32 vcc, 4, %s' % vr(fq))
    g.I('v_cndmask_b32 %s, %s, %s, vcc' % (vr(a0), vr(a0), vr(t2)))
    g.I('v_add_u32 %s, 832, %s' % (vr(t2), vr(a1)))
    g.I('v_cmp_lt_u32 vcc, 3, %s' % vr(fq))
    g.I('v_cndmask_b32 %s, %s, %s, vcc' % (vr(a1), vr(a1), vr(t2)))
    g.I('v_cmp_gt_u32 vcc, 180, v0')
    g.I('s_and_saveexec_b64 s[90:91], vcc')
    g.I('ds_write_b32 %s, %s' % (vr(a0), vr(PRT + 4)), lg='t')
    g.I('ds_write_b32 %s, %s' % (vr(a1), vr(PRT + 5)), lg='t')
    g.I('s_mov_b64 exec, -1')
    g.label('K2_NOTAB')
    g.reset_hist()
    g.I('s_nop 1')
    P = 30
    EP = 128
    EN = 146
    T4 = 48
    E = 52
    for m in range(9):
        g.I('v_lshlrev_b32 %s, 16, %s' % (vr(P + 2 * m), vr(PQ + m)))
        g.I('v_and_b32 %s, 0xffff0000, %s' % (vr(P + 2 * m + 1), vr(PQ + m)))
    softmax_exps(g, P, EP, EN, T4, 72)
    g.wait_lg_all()
    for m in range(9):
        g.I('v_cvt_pk_bf16_f32 %s, %s, %s' % (vr(E + m), vr(EP + 2 * m), vr(EP + 2 * m + 1)))
        g.I('v_cvt_pk_bf16_f32 %s, %s, %s' % (vr(E + 9 + m), vr(EN + 2 * m), vr(EN + 2 * m + 1)))
    g.I('v_mov_b32 %s, 0' % vr(E + 18))
    g.I('v_mov_b32 %s, 0' % vr(E + 19))
    g.I('v_and_b32 %s, 3, %s' % (vr(vT), vr(vI)))
    g.I('v_lshlrev_b32 %s, 4, %s' % (vr(vT), vr(vT)))
    g.I('v_mov_b32 %s, 1920' % vr(vT + 1))
    g.I('v_lshrrev_b32 %s, 2, %s' % (vr(vT + 2), vr(vI)))
    g.I('v_cmp_eq_u32 vcc, %s, %s' % (vr(vT + 2), vr(vG)))
    g.I('v_cndmask_b32 %s, %s, %s, vcc' % (vr(vT), vr(vT + 1), vr(vT)))
    stamp(g, 4, 18)
    g.I('s_barrier')
    stamp(g, 5, 18)
    AF = 128
    N = 72
    for f in range(30):
        g.I('ds_read_b128 %s, %s offset:%d' % (vr(AF + 4 * f, 4), vr(vT), f * 64), lg=('a', f // 3))
        if f >= 12 and f % 3 == 2:
            pass
        if f % 3 == 2 and f >= 11:
            so = f // 3 - 3
            g.wait_lg(('a', so))
            sg, oc = divmod(so, 5)
            for icl in range(3):
                cc = '0' if icl == 0 else vr(N + 4 * so, 4)
                g.I('v_mfma_f32_16x16x32_bf16 %s, %s, %s, %s' % (
                    vr(N + 4 * so, 4), vr(AF + 4 * (3 * so + icl), 4), vr(E + 4 * (icl + 2 * sg), 4), cc))
    for so in range(7, 10):
        g.wait_lg(('a', so))
        sg, oc = divmod(so, 5)
        for icl in range(3):
            cc = '0' if icl == 0 else vr(N + 4 * so, 4)
            g.I('v_mfma_f32_16x16x32_bf16 %s, %s, %s, %s' % (
                vr(N + 4 * so, 4), vr(AF + 4 * (3 * so + icl), 4), vr(E + 4 * (icl + 2 * sg), 4), cc))
    Np, Nn = N, N + 20
    ra, rb, den = 8, 10, 12
    g.I('v_rcp_f32 %s, %s' % (vr(ra), vr(Np + 19)))
    g.I('v_rcp_f32 %s, %s' % (vr(rb), vr(Nn + 19)))
    g.I('v_mov_b32 %s, 0x358637bd' % vr(den))
    g.I('v_fmac_f32 %s, %s, %s' % (vr(den), vr(Np + 18), vr(ra)))
    g.I('v_fmac_f32 %s, %s, %s' % (vr(den), vr(Nn + 18), vr(rb)))
    g.I('v_rcp_f32 %s, %s' % (vr(den), vr(den)))
    g.I('v_mul_f32 %s, %s, %s' % (vr(ra), vr(ra), vr(den)))
    g.I('v_mul_f32 %s, %s, %s' % (vr(rb), vr(rb), vr(den)))
    for k_ in range(0, 18, 2):
        g.I('v_pk_mul_f32 %s, %s, %s op_sel_hi:[1,0]' % (vr(Np + k_, 2), vr(Np + k_, 2), vr(ra, 2)))
        g.I('v_pk_fma_f32 %s, %s, %s, %s op_sel_hi:[1,0,1]' % (vr(Np + k_, 2), vr(Nn + k_, 2), vr(rb, 2), vr(Np + k_, 2)))
    O = 20
    for m in range(9):
        g.I('v_cvt_pk_bf16_f32 %s, %s, %s' % (vr(O + m), vr(Np + 2 * m), vr(Np + 2 * m + 1)))
    g.I('s_lshr_b32 s62, s60, 5')
    g.I('s_and_b32 s63, s60, 31')
    g.I('s_mul_i32 s67, s62, 72')
    g.I('s_lshl_b32 s69, s63, 1')
    g.I('s_add_u32 s69, s69, s67')
    g.I('s_lshl_b32 s69, s69, 15')
    g.I('s_add_u32 s69, s69, 0x%x' % WS_OF)
    g.I('s_add_u32 s70, s69, 32768')
    g.I('s_lshr_b32 s71, s63, 2')
    g.I('s_add_u32 s71, s71, s67')
    g.I('s_add_u32 s71, s71, 64')
    g.I('s_lshl_b32 s71, s71, 15')
    g.I('s_and_b32 s67, s63, 3')
    g.I('s_lshl_b32 s67, s67, 2')
    g.I('s_add_u32 s71, s71, s67')
    g.I('s_add_u32 s71, s71, 0x%x' % WS_OF)
    g.I('buffer_store_dwordx4 %s, %s, s[16:19], s69 offen' % (vr(O, 4), vr(vTok16)), vm='st')
    g.I('buffer_store_dwordx4 %s, %s, s[16:19], s70 offen' % (vr(O + 4, 4), vr(vTok16)), vm='st')
    g.I('buffer_store_dword %s, %s, s[16:19], s71 offen' % (vr(O + 8), vr(vTok16)), vm='st')
    stamp(g, 16, 18)
    if STAMP:
        g.wait_vm_all()
    stamp(g, 17, 18)
    stamp(g, 18, 18, True)
    stamp_store(g, 18, 19, 1, 8)
    g.label('K2_END')
    g.I('s_endpgm')
    g.reset_hist()
    g.vmq = []
    g.lgq = []


K3_LDS = 4 * 20 * 1024


def k3(g):
    g.raw('.p2align 8')
    g.label('hh_k3_kernel')
    g.I('s_cmp_ge_u32 s2, 256')
    g.I('s_cbranch_scc1 K3_END')
    g.I('s_load_dwordx2 s[54:55], s[0:1], 72')
    g.I('s_load_dwordx2 s[58:59], s[0:1], 88')
    stamp(g, 0, 15)
    stamp(g, 1, 15, True)
    g.I('s_and_b32 s65, s2, 7')
    g.I('s_lshr_b32 s66, s2, 3')
    g.I('s_lshr_b32 s60, s65, 1')
    g.I('s_lshl_b32 s60, s60, 3')
    g.I('s_and_b32 s67, s66, 7')
    g.I('s_add_u32 s60, s60, s67')
    g.I('s_and_b32 s61, s65, 1')
    g.I('s_lshl_b32 s61, s61, 2')
    g.I('s_lshr_b32 s67, s66, 3')
    g.I('s_add_u32 s61, s61, s67')
    vLane, vG, vI, vT = 1, 2, 3, 4
    vO, vW, vW4, vGt, GT = 10, 11, 12, 13, 14
    g.I('v_and_b32 %s, 63, v0' % vr(vLane))
    g.I('v_lshrrev_b32 %s, 6, v0' % vr(vT))
    g.I('v_lshrrev_b32 %s, 4, %s' % (vr(vG), vr(vLane)))
    g.I('v_readfirstlane_b32 s64, %s' % vr(vT))
    g.I('v_and_b32 %s, 15, %s' % (vr(vI), vr(vLane)))
    g.I('v_lshl_add_u32 %s, %s, 11, %s' % (vr(vT), vr(vG), vr(vI)))
    g.I('v_lshlrev_b32 %s, 4, %s' % (vr(vO), vr(vT)))
    g.I('v_mul_u32_u24 %s, 576, %s' % (vr(vT), vr(vG)))
    g.I('v_lshrrev_b32 %s, 2, %s' % (vr(vT + 1), vr(vI)))
    g.I('v_mul_u32_u24 %s, 18, %s' % (vr(vT + 1), vr(vT + 1)))
    g.I('v_and_b32 %s, 3, %s' % (vr(vT + 2), vr(vI)))
    g.I('v_add3_u32 %s, %s, %s, %s' % (vr(vT), vr(vT), vr(vT + 1), vr(vT + 2)))
    g.I('v_lshlrev_b32 %s, 4, %s' % (vr(vW), vr(vT)))
    g.I('v_mov_b32 %s, 0x%x' % (vr(vT + 1), OOB))
    g.I('v_cmp_lt_u32 vcc, 13, %s' % vr(vI))
    g.I('v_cndmask_b32 %s, %s, %s, vcc' % (vr(vW4), vr(vW), vr(vT + 1)))
    g.I('s_mul_i32 s68, s64, 36*2048*16')
    g.I('s_lshl_b32 s67, s60, 10')
    g.I('s_add_u32 s68, s68, s67')
    g.I('s_add_u32 s68, s68, 0x%x' % WS_OF)
    g.I('s_mul_i32 s69, s64, 36*576*16')
    g.I('s_mul_i32 s67, s61, 72*16')
    g.I('s_add_u32 s69, s69, s67')
    g.I('s_add_u32 s69, s69, 0x%x' % WS_WOF)
    g.I('s_lshl_b32 s70, s60, 8')
    g.I('s_lshl_b32 s67, s64, 6')
    g.I('s_add_u32 s70, s70, s67')
    g.I('s_add_u32 s70, s70, 0x%x' % WS_G)
    g.I('v_lshlrev_b32 %s, 2, %s' % (vr(vGt), vr(vI)))
    g.I('s_waitcnt lgkmcnt(0)')
    srd(g, 16, 58, WS_SIZE)
    srd(g, 8, 54, 2048 * 1152)
    ACC = 16
    NB = 4
    PD = 3

    def loads(s):
        base = (s % NB) * 36
        for t in range(5):
            g.I('buffer_load_dwordx4 %s, %s, s[16:19], s69 offen offset:%d' % (
                ar(base + 16 + 4 * t, 4), vr(vW4 if t == 4 else vW), 64 * t), vm=('k', s))
            if t < 4:
                g.I('buffer_load_dwordx4 %s, %s, s[16:19], s68 offen offset:%d' % (ar(base + 4 * t, 4), vr(vO), 256 * t),
                    vm=('k', s))
        g.I('s_add_u32 s68, s68, %d' % (4 * 2048 * 16))
        g.I('s_add_u32 s69, s69, %d' % (4 * 576 * 16))

    for s in range(PD):
        loads(s)
    g.I('buffer_load_dword %s, %s, s[16:19], s70 offen' % (vr(GT), vr(vGt)), vm='g')
    for s in range(9):
        g.wait_vm(('k', s))
        stamp(g, 2 + s, 15)
        if s + PD < 9:
            loads(s + PD)
        base = (s % NB) * 36
        for t in range(5):
            for u in range(4):
                A = ACC + (u * 5 + t) * 4
                cc = '0' if s == 0 else vr(A, 4)
                g.I('v_mfma_f32_16x16x32_bf16 %s, %s, %s, %s' % (
                    vr(A, 4), ar(base + 16 + 4 * t, 4), ar(base + 4 * u, 4), cc))
    stamp(g, 12, 15)
    g.I('s_mul_i32 s67, s64, 20480')
    g.I('v_lshl_add_u32 %s, %s, 4, s67' % (vr(vT), vr(vLane)))
    g.I('s_mul_i32 s67, s64, 5120')
    g.I('v_lshl_add_u32 %s, %s, 4, s67' % (vr(vT + 1), vr(vLane)))
    g.I('v_add_u32 %s, 40960, %s' % (vr(vT + 4), vr(vT + 1)))
    g.I('s_lshl_b32 s67, s60, 6')
    g.I('s_lshl_b32 s71, s64, 4')
    g.I('s_add_u32 s67, s67, s71')
    g.I('v_add_u32 %s, s67, %s' % (vr(vT + 2), vr(vI)))
    g.I('v_mul_u32_u24 %s, 1152, %s' % (vr(vT + 2), vr(vT + 2)))
    g.I('v_mul_u32_u24 %s, 36, %s' % (vr(vT + 3), vr(vG)))
    g.I('s_mul_i32 s67, s61, 144')
    g.I('v_add3_u32 %s, %s, %s, s67' % (vr(vT + 2), vr(vT + 2), vr(vT + 3)))
    for k_ in range(20):
        g.I('ds_write_b128 %s, %s offset:%d' % (vr(vT), vr(ACC + 4 * k_, 4), k_ * 1024), lg='w')
        if len(g.lgq) >= 14:
            g.I('s_waitcnt lgkmcnt(6)')
            g.lgq = g.lgq[-6:]
    g.wait_lg_all()
    g.I('s_barrier')
    stamp(g, 13, 15)
    R = 16
    for w in range(4):
        for t in range(5):
            g.I('ds_read_b128 %s, %s offset:%d' % (vr(R + (w * 5 + t) * 4, 4), vr(vT + 1 if w < 2 else vT + 4),
                                                   (w & 1) * 20480 + t * 1024), lg=('r', w))
        if w == 1:
            g.wait_lg(('r', 1))
            for k_ in range(0, 18, 2):
                g.I('v_pk_add_f32 %s, %s, %s' % (vr(R + k_, 2), vr(R + k_, 2), vr(R + 20 + k_, 2)))
    g.wait_lg(('r', 3))
    g.wait_vm('g')
    for k_ in range(0, 18, 2):
        g.I('v_pk_add_f32 %s, %s, %s' % (vr(R + 40 + k_, 2), vr(R + 40 + k_, 2), vr(R + 60 + k_, 2)))
    for k_ in range(0, 18, 2):
        g.I('v_pk_add_f32 %s, %s, %s neg_lo:[0,1] neg_hi:[0,1]' % (vr(R + k_, 2), vr(R + k_, 2), vr(R + 40 + k_, 2)))
        g.I('v_pk_fma_f32 %s, %s, %s, %s op_sel_hi:[1,0,1]' % (vr(R + k_, 2), vr(R + k_, 2), vr(GT, 2), vr(R + 40 + k_, 2)))
    OUT = 100
    for m in range(9):
        g.I('v_cvt_pk_bf16_f32 %s, %s, %s' % (vr(OUT + m), vr(R + 2 * m), vr(R + 2 * m + 1)))
    g.I('buffer_store_dwordx4 %s, %s, s[8:11], 0 offen' % (vr(OUT, 4), vr(vT + 2)), vm='st')
    g.I('buffer_store_dwordx4 %s, %s, s[8:11], 0 offen offset:16' % (vr(OUT + 4, 4), vr(vT + 2)), vm='st')
    g.I('buffer_store_dword %s, %s, s[8:11], 0 offen offset:32' % (vr(OUT + 8), vr(vT + 2)), vm='st')
    stamp(g, 16, 15)
    if STAMP:
        g.wait_vm_all()
    stamp(g, 17, 15)
    stamp(g, 18, 15, True)
    stamp_store(g, 15, 4, 2, 4)
    g.label('K3_END')
    g.I('s_endpgm')
    g.reset_hist()
    g.vmq = []
    g.lgq = []


def descriptor(name, nvgpr, accum, nsgpr=102):
    return '''.amdhsa_kernel %s
  .amdhsa_next_free_vgpr %d
  .amdhsa_next_free_sgpr %d
  .amdhsa_accum_offset %d
  .amdhsa_group_segment_fixed_size 0
  .amdhsa_kernarg_size 96
  .amdhsa_user_sgpr_count 2
  .amdhsa_user_sgpr_kernarg_segment_ptr 1
  .amdhsa_system_sgpr_workgroup_id_x 1
.end_amdhsa_kernel
''' % (name, nvgpr, nsgpr, accum)


def main(out):
    g = Gen()
    hdr = open('cdna_kernels/%s.s.ref' % NAME).read().split('\n')
    head = [l for l in hdr if l.startswith(';') and '@launch' not in l and 'Override launch' not in l
            and 'grid=ceil' not in l]
    txt = '\n'.join(head) + '\n'
    txt += '; @launch kernel=hh_k1_kernel grid=(256,1,1) block=(512,1,1) lds=%d\n' % K1_LDS
    txt += '; @launch kernel=hh_k2_kernel grid=(256,1,1) block=(512,1,1) lds=%d\n' % K2_LDS
    txt += '; @launch kernel=hh_k3_kernel grid=(256,1,1) block=(256,1,1) lds=%d\n' % K3_LDS
    txt += '.amdgcn_target "amdgcn-amd-amdhsa--gfx950"\n.text\n'
    for k in ('hh_k1_kernel', 'hh_k2_kernel', 'hh_k3_kernel'):
        txt += '.globl %s\n.type %s,@function\n' % (k, k)
    k1(g)
    k2(g)
    k3(g)
    txt += g.text()
    txt += '.section .rodata,"a"\n.p2align 6\n'
    txt += descriptor('hh_k1_kernel', 192 + 60, 192)
    txt += '.p2align 6\n'
    txt += descriptor('hh_k2_kernel', 248, 248)
    txt += '.p2align 6\n'
    txt += descriptor('hh_k3_kernel', 112 + 144, 112)
    open(out, 'w').write(txt)
    print('instrs', g.nins, 'nops', g.nops)


if __name__ == '__main__':
    if len(sys.argv) > 2 and sys.argv[2] == 'stamp':
        STAMP = True
    main(sys.argv[1] if len(sys.argv) > 1 else 'cdna_kernels/%s.s' % NAME)
```
